```python
import torch

def _softmax(x, axis=-1):
    return torch.softmax(x, dim=axis)

def _gelu(x):
    return torch.nn.functional.gelu(x, approximate='tanh')

def _silu(x):
    return torch.nn.functional.silu(x)

def _sigmoid(x):
    return torch.sigmoid(x)

def _layernorm(x, axis=-1, eps=1e-05):
    m = x.mean(dim=axis, keepdim=True)
    v = x.var(dim=axis, keepdim=True, unbiased=False)
    return (x - m) / torch.sqrt(v + eps)

def _scatter_add(tgt, idx, src, axis=0):
    return tgt.clone().index_add_(axis, idx, src)

def _segment_sum(src, seg, n):
    out = torch.zeros((n,) + src.shape[1:], dtype=src.dtype)
    return out.index_add_(0, seg, src)

def _pad(x, pw):
    flat = tuple((v for pair in reversed(pw) for v in pair))
    return torch.nn.functional.pad(x, flat)
kernel_name = 'gated_mix__spectral_fnet__mixer_gmlp__prompt'

def setup_inputs():

    _w = lambda a: (lambda t: t.to(torch.bfloat16) if t.is_floating_point() else t)(torch.as_tensor(a))

    def _A_setup():
        B, S, D = (1, 2048, 640)
        ns = torch.arange(S)[:, None] * torch.arange(S)[None, :]
        nd = torch.arange(D)[:, None] * torch.arange(D)[None, :]
        Ws_re = torch.cos(-2.0 * torch.pi * ns / S).to(float)
        Ws_im = torch.sin(-2.0 * torch.pi * ns / S).to(float)
        Wd_re = torch.cos(-2.0 * torch.pi * nd / D).to(float)
        Wd_im = torch.sin(-2.0 * torch.pi * nd / D).to(float)
        return {'x': _w((lambda *s: torch.randn(*s, dtype=torch.bfloat16) * 0.05)(B, S, D)), 'dft_seq_re': _w(Ws_re), 'dft_seq_im': _w(Ws_im), 'dft_hid_re': _w(Wd_re), 'dft_hid_im': _w(Wd_im)}
    _A_in = _A_setup()

    def _B_setup():
        B, S, D, F = (1, 2048, 640, 1536)
        Fh = F // 2
        return {'x': _w((lambda *s: torch.randn(*s, dtype=torch.bfloat16) * 0.05)(B, S, D)), 'w_in': _w((lambda *s: torch.randn(*s, dtype=torch.bfloat16) * 0.8)(D, 2 * Fh)), 'w_sp': _w(0.01 * (lambda *s: torch.randn(*s, dtype=torch.bfloat16) * 0.8)(S, S)), 'b_sp': _w(1.0 + 0.01 * (lambda *s: torch.randn(*s, dtype=torch.bfloat16) * 0.8)(S)), 'w_out': _w((lambda *s: torch.randn(*s, dtype=torch.bfloat16) * 0.8)(Fh, D))}
    _B_in = _B_setup()
    return {'A_x': _A_in['x'], 'A_dft_seq_re': _A_in['dft_seq_re'], 'A_dft_seq_im': _A_in['dft_seq_im'], 'A_dft_hid_re': _A_in['dft_hid_re'], 'A_dft_hid_im': _A_in['dft_hid_im'], 'B_x': _B_in['x'], 'B_w_in': _B_in['w_in'], 'B_w_sp': _B_in['w_sp'], 'B_b_sp': _B_in['b_sp'], 'B_w_out': _B_in['w_out'], 'gate_w': _w((lambda *s: torch.randn(*s, dtype=torch.bfloat16) * 0.05)(640) * 16.0)}

def reference(A_x, A_dft_seq_re, A_dft_seq_im, A_dft_hid_re, A_dft_hid_im, B_x, B_w_in, B_w_sp, B_b_sp, B_w_out, gate_w):

    def _A_ref(x, dft_seq_re, dft_seq_im, dft_hid_re, dft_hid_im):
        a = torch.einsum('bsd,ed->bse', x, dft_hid_re)
        b = torch.einsum('bsd,ed->bse', x, dft_hid_im)
        y = torch.einsum('ts,bse->bte', dft_seq_re, a) - torch.einsum('ts,bse->bte', dft_seq_im, b)
        return y

    def _B_ref(x, w_in, w_sp, b_sp, w_out):
        B, S, D = x.shape
        F = w_in.shape[-1]
        Fh = F // 2
        z = _gelu(torch.einsum('bsd,df->bsf', x, w_in))
        z1 = z[..., :Fh].clone()
        z2 = _layernorm(z[..., Fh:], axis=-1)
        g = torch.einsum('ts,bsf->btf', w_sp, z2) + b_sp[None, :, None]
        return torch.einsum('bsf,fd->bsd', z1 * g, w_out)
    x = A_x
    g = _sigmoid((x * gate_w).sum(-1, keepdims=True))
    a = _A_ref(x, A_dft_seq_re, A_dft_seq_im, A_dft_hid_re, A_dft_hid_im)
    b = _B_ref(x, B_w_in, B_w_sp, B_b_sp, B_w_out)
    return g * a + (1 - g) * b
```

```python
import sys
HEAD = open('gated_mix__spectral_fnet__mixer_gmlp__prompt.s.ref').read().split('; Override launch')[0]
MB = 1 << 20
WINT, WOUTT, Z, A_, B_, Z2T, AT, BT, G2, Y1, Y2, H, OB, GATE = 0, 2*MB, 4*MB, 20*MB, 28*MB, 36*MB, 40*MB, 44*MB, 48*MB, 56*MB, 64*MB, 72*MB, 76*MB, 84*MB
PTR = dict(x=0, sre=8, sim=16, hre=24, him=32, bx=40, win=48, wsp=56, bsp=64, wout=72, gw=80, out=88, dbg=96, ws=104)
SZ = dict(x=2048*640*2, sre=2048*2048*2, sim=2048*2048*2, hre=640*640*2, him=640*640*2, bx=2048*640*2, win=640*1536*2, wsp=2048*2048*2, bsp=4096, wout=768*640*2, gw=1280, out=2048*640*2, dbg=256, ws=256*MB)

class K:
    def __init__(s, name, grid, block=64, vgpr=128):
        s.name, s.grid, s.block, s.vgpr = name, grid, block, vgpr; s.L = []
        s('s_cmp_ge_u32 s2, %d' % grid); s('s_cbranch_scc1 %s_end' % name)
    def __call__(s, x):
        for l in x.split('\n'):
            l = l.strip()
            if l: s.L.append(l if l.endswith(':') else '    ' + l)
    def srd(s, r, buf, off=0, size=None):
        s('s_load_dwordx2 s[%d:%d], s[0:1], %d' % (r, r+1, PTR[buf])); s('s_waitcnt lgkmcnt(0)')
        if off:
            s('s_add_u32 s%d, s%d, %d' % (r, r, off)); s('s_addc_u32 s%d, s%d, 0' % (r+1, r+1))
        s('s_mov_b32 s%d, %d' % (r+2, size if size else SZ[buf] - off)); s('s_mov_b32 s%d, 0x20000' % (r+3))
    def text(s):
        return '.globl %s\n.p2align 8\n.type %s,@function\n%s:\n' % (s.name, s.name, s.name) + '\n'.join(s.L) + '\n%s_end:\n    s_endpgm\n' % s.name
    def kd(s):
        return '''.p2align 6
.amdhsa_kernel %s
  .amdhsa_next_free_vgpr %d
  .amdhsa_next_free_sgpr 102
  .amdhsa_accum_offset %d
  .amdhsa_group_segment_fixed_size 0
  .amdhsa_kernarg_size 112
  .amdhsa_user_sgpr_count 2
  .amdhsa_user_sgpr_kernarg_segment_ptr 1
  .amdhsa_system_sgpr_workgroup_id_x 1
.end_amdhsa_kernel
''' % (s.name, s.vgpr, s.vgpr)

def divmod_s(k, dq, dr, src, n):
    k('s_mov_b32 s%d, %d' % (dq, -(-(1 << 32) // n))); k('s_mul_hi_u32 s%d, s%d, s%d' % (dq, src, dq))
    k('s_mul_i32 s%d, s%d, %d' % (dr, dq, n)); k('s_sub_u32 s%d, s%d, s%d' % (dr, src, dr))

def transpose(name, src, R, C, dstoff):
    k = K(name, R * C // 64)
    k.srd(8, src); k.srd(12, 'ws', dstoff, R*C*2)
    divmod_s(k, 4, 5, 2, C // 64)
    k('s_lshl_b32 s5, s5, 6'); k('v_add_u32 v1, s5, v0')
    k('s_mul_i32 s6, s4, %d' % (C*2)); k('v_lshlrev_b32 v2, 1, v1'); k('buffer_load_ushort v3, v2, s[8:11], s6 offen')
    k('s_mov_b32 s7, %d' % (R*2)); k('v_mul_lo_u32 v4, v1, s7'); k('s_lshl_b32 s6, s4, 1')
    k('s_waitcnt vmcnt(0)'); k('buffer_store_short v3, v4, s[12:15], s6 offen')
    return k

def gemm(name, A, B, M, N, Kd, coff):
    k = K(name, (M//64)*(N//64), vgpr=144)
    k.srd(8, A[0], A[1], M*Kd*2); k.srd(12, B[0], B[1], N*Kd*2); k.srd(16, 'ws', coff, M*N*4)
    divmod_s(k, 4, 5, 2, N // 64)
    k('v_and_b32 v1, 31, v0'); k('v_lshrrev_b32 v2, 5, v0')
    k('s_mov_b32 s6, %d' % (Kd*2)); k('v_mul_lo_u32 v3, v1, s6'); k('v_lshl_add_u32 v3, v2, 4, v3')
    k('v_add_u32 v4, %d, v3' % (32*Kd*2))
    k('s_mul_i32 s20, s4, %d' % (64*Kd*2)); k('s_mul_i32 s21, s5, %d' % (64*Kd*2))
    for i in range(64): k('v_mov_b32 v%d, 0' % (8+i))
    k('s_mov_b32 s22, %d' % (Kd//64))
    k('%s_loop:' % name)
    for u in range(4):
        b = 72 + 16*u
        k('buffer_load_dwordx4 v[%d:%d], v3, s[8:11], s20 offen offset:%d' % (b, b+3, 32*u))
        k('buffer_load_dwordx4 v[%d:%d], v4, s[8:11], s20 offen offset:%d' % (b+4, b+7, 32*u))
        k('buffer_load_dwordx4 v[%d:%d], v3, s[12:15], s21 offen offset:%d' % (b+8, b+11, 32*u))
        k('buffer_load_dwordx4 v[%d:%d], v4, s[12:15], s21 offen offset:%d' % (b+12, b+15, 32*u))
    for u in range(4):
        b = 72 + 16*u
        k('s_waitcnt vmcnt(%d)' % (12 - 4*u))
        for i in range(2):
            for j in range(2):
                c = 8 + 16*(2*i+j)
                k('v_mfma_f32_32x32x16_bf16 v[%d:%d], v[%d:%d], v[%d:%d], v[%d:%d]' % (c, c+15, b+4*i, b+4*i+3, b+8+4*j, b+8+4*j+3, c, c+15))
    k('s_add_u32 s20, s20, 128'); k('s_add_u32 s21, s21, 128'); k('s_sub_u32 s22, s22, 1'); k('s_cmp_lg_u32 s22, 0'); k('s_cbranch_scc1 %s_loop' % name)
    k('s_nop 15'); k('s_nop 7')
    k('s_mov_b32 s6, %d' % (N*4*4)); k('v_mul_lo_u32 v5, v2, s6'); k('v_lshl_add_u32 v5, v1, 2, v5')
    k('s_mul_i32 s20, s4, %d' % (64*N*4)); k('s_lshl_b32 s21, s5, 8'); k('s_add_u32 s20, s20, s21')
    for i in range(2):
        for r in range(16):
            row = 32*i + (r & 3) + 8*(r >> 2)
            k('s_add_u32 s21, s20, %d' % (row*N*4))
            for j in range(2):
                k('buffer_store_dword v%d, v5, s[16:19], s21 offen offset:%d' % (8 + 16*(2*i+j) + r, 128*j))
    return k

def wave_sum(k, v, t, sd):
    for sh in (8, 4, 2, 1):
        k('s_nop 1'); k('v_add_f32_dpp v%d, v%d, v%d row_ror:%d row_mask:0xf bank_mask:0xf' % (v, v, v, sh))
    k('s_nop 1')
    for i in range(4): k('v_readlane_b32 s%d, v%d, %d' % (sd+i, v, 16*i))
    k('s_nop 1')
    k('v_mov_b32 v%d, s%d' % (v, sd))
    for i in range(1, 4): k('v_add_f32 v%d, s%d, v%d' % (v, sd+i, v))

def gelu(k, v, t):
    import math, struct
    c1 = -2*math.log2(math.e)*math.sqrt(2/math.pi); c2 = c1*0.044715
    f = lambda x: '0x%08x' % struct.unpack('<I', struct.pack('<f', x))[0]
    k('v_mul_f32 v%d, v%d, v%d' % (t, v, v)); k('v_mul_f32 v%d, %s, v%d' % (t, f(c2), t)); k('v_add_f32 v%d, %s, v%d' % (t, f(c1), t))
    k('v_mul_f32 v%d, v%d, v%d' % (t, t, v)); k('v_exp_f32 v%d, v%d' % (t, t)); k('s_nop 0'); k('v_add_f32 v%d, 1.0, v%d' % (t, t)); k('v_rcp_f32 v%d, v%d' % (t, t)); k('s_nop 0')
    k('v_mul_f32 v%d, v%d, v%d' % (v, v, t))

def e1():
    k = K('e1_kernel', 2048)
    k.srd(8, 'ws'); k.srd(12, 'x'); k.srd(16, 'gw')
    k('v_lshlrev_b32 v1, 2, v0'); k('v_lshlrev_b32 v2, 1, v0')
    k('s_mul_i32 s4, s2, %d' % (1536*4)); k('s_add_u32 s4, s4, %d' % Z)
    for i in range(24):
        k('s_add_u32 s5, s4, %d' % (256*i)); k('buffer_load_dword v%d, v1, s[8:11], s5 offen' % (8+i))
    k('s_mul_i32 s6, s2, %d' % (640*4))
    for i in range(10):
        k('s_add_u32 s5, s6, %d' % (A_ + 256*i)); k('buffer_load_dword v%d, v1, s[8:11], s5 offen' % (40+i))
        k('s_add_u32 s5, s6, %d' % (B_ + 256*i)); k('buffer_load_dword v%d, v1, s[8:11], s5 offen' % (50+i))
    k('s_mul_i32 s7, s2, 1280')
    for i in range(10):
        k('buffer_load_ushort v%d, v2, s[12:15], s7 offen offset:%d' % (60+i, 128*i))
        k('buffer_load_ushort v%d, v2, s[16:19], 0 offen offset:%d' % (70+i, 128*i))
    k('s_waitcnt vmcnt(0)')
    for i in range(24): gelu(k, 8+i, 3)
    for i in range(12):
        k('s_add_u32 s5, s4, %d' % (256*i)); k('buffer_store_dword v%d, v1, s[8:11], s5 offen' % (8+i))
    k('v_mov_b32 v4, 0')
    for i in range(12): k('v_add_f32 v4, v4, v%d' % (20+i))
    wave_sum(k, 4, 3, 24)
    k('v_mul_f32 v4, 0x3aaaaaab, v4')
    k('v_mov_b32 v5, 0')
    for i in range(12):
        k('v_sub_f32 v%d, v%d, v4' % (20+i, 20+i)); k('v_fmac_f32 v5, v%d, v%d' % (20+i, 20+i))
    wave_sum(k, 5, 3, 24)
    k('v_mul_f32 v5, 0x3aaaaaab, v5'); k('v_add_f32 v5, 0x3727c5ac, v5'); k('v_rsq_f32 v5, v5'); k('s_nop 0')
    k('v_lshlrev_b32 v6, 12, v0')
    k('s_lshl_b32 s20, s2, 1')
    for i in range(12):
        k('v_mul_f32 v%d, v%d, v5' % (20+i, 20+i)); k('v_cvt_pk_bf16_f32 v%d, v%d, v%d' % (20+i, 20+i, 20+i))
        k('s_add_u32 s5, s20, %d' % (Z2T + 64*4096*i)); k('buffer_store_short v%d, v6, s[8:11], s5 offen' % (20+i))
    for i in range(10):
        k('v_cvt_pk_bf16_f32 v%d, v%d, v%d' % (40+i, 40+i, 40+i)); k('s_add_u32 s5, s20, %d' % (AT + 64*4096*i)); k('buffer_store_short v%d, v6, s[8:11], s5 offen' % (40+i))
        k('v_cvt_pk_bf16_f32 v%d, v%d, v%d' % (50+i, 50+i, 50+i)); k('s_add_u32 s5, s20, %d' % (BT + 64*4096*i)); k('buffer_store_short v%d, v6, s[8:11], s5 offen' % (50+i))
    k('v_mov_b32 v4, 0')
    for i in range(10):
        k('v_lshlrev_b32 v%d, 16, v%d' % (60+i, 60+i)); k('v_lshlrev_b32 v%d, 16, v%d' % (70+i, 70+i)); k('v_fmac_f32 v4, v%d, v%d' % (60+i, 70+i))
    wave_sum(k, 4, 3, 24)
    k('v_mul_f32 v4, 0xbfb8aa3b, v4'); k('v_exp_f32 v4, v4'); k('s_nop 0'); k('v_add_f32 v4, 1.0, v4'); k('v_rcp_f32 v4, v4'); k('s_nop 0')
    k('s_lshl_b32 s5, s2, 2'); k('s_add_u32 s5, s5, %d' % GATE); k('v_mov_b32 v5, 0'); k('buffer_store_dword v4, v5, s[8:11], s5 offen')
    return k

def e2():
    k = K('e2_kernel', 2048)
    k.srd(8, 'ws'); k.srd(12, 'bsp')
    k('v_lshlrev_b32 v1, 2, v0'); k('v_lshlrev_b32 v2, 1, v0'); k('v_mov_b32 v3, 0')
    k('s_mul_i32 s4, s2, %d' % (1536*4)); k('s_mul_i32 s6, s2, %d' % (768*4)); k('s_mul_i32 s7, s2, %d' % (768*2)); k('s_lshl_b32 s20, s2, 1')
    k('buffer_load_ushort v4, v3, s[12:15], s20 offen')
    for i in range(12):
        k('s_add_u32 s5, s4, %d' % (Z + 256*i)); k('buffer_load_dword v%d, v1, s[8:11], s5 offen' % (8+i))
        k('s_add_u32 s5, s6, %d' % (G2 + 256*i)); k('buffer_load_dword v%d, v1, s[8:11], s5 offen' % (20+i))
    k('s_waitcnt vmcnt(0)'); k('v_lshlrev_b32 v4, 16, v4')
    for i in range(12):
        k('v_add_f32 v%d, v%d, v4' % (20+i, 20+i)); k('v_mul_f32 v%d, v%d, v%d' % (8+i, 8+i, 20+i)); k('v_cvt_pk_bf16_f32 v%d, v%d, v%d' % (8+i, 8+i, 8+i))
        k('s_add_u32 s5, s7, %d' % (H + 128*i)); k('buffer_store_short v%d, v2, s[8:11], s5 offen' % (8+i))
    return k

def e3():
    k = K('e3_kernel', 2048)
    k.srd(8, 'ws'); k.srd(12, 'out')
    k('v_lshlrev_b32 v1, 2, v0'); k('v_lshlrev_b32 v2, 1, v0'); k('v_mov_b32 v3, 0')
    k('s_mul_i32 s4, s2, %d' % (640*4)); k('s_mul_i32 s7, s2, 1280'); k('s_lshl_b32 s20, s2, 2'); k('s_add_u32 s20, s20, %d' % GATE)
    k('buffer_load_dword v4, v3, s[8:11], s20 offen')
    for i in range(10):
        for j, o in enumerate((Y1, Y2, OB)):
            k('s_add_u32 s5, s4, %d' % (o + 256*i)); k('buffer_load_dword v%d, v1, s[8:11], s5 offen' % (8 + 10*j + i))
    k('s_waitcnt vmcnt(0)'); k('v_sub_f32 v5, 1.0, v4')
    for i in range(10):
        k('v_sub_f32 v%d, v%d, v%d' % (8+i, 8+i, 18+i)); k('v_mul_f32 v%d, v%d, v4' % (8+i, 8+i)); k('v_fmac_f32 v%d, v5, v%d' % (8+i, 28+i))
        k('v_cvt_pk_bf16_f32 v%d, v%d, v%d' % (8+i, 8+i, 8+i)); k('buffer_store_short v%d, v2, s[12:15], s7 offen offset:%d' % (8+i, 128*i))
    return k

def empty(name, grid=256):
    return K(name, grid)

def stream(name, bufs, nt=False):
    k = K(name, 256, block=256)
    k('v_lshlrev_b32 v1, 4, v0')
    for b in bufs:
        k.srd(8, b)
        per = SZ[b] // 256
        k('s_mul_i32 s4, s2, %d' % per)
        for i in range(per // 4096):
            k('buffer_load_dwordx4 v[%d:%d], v1, s[8:11], s4 offen%s' % (8 + 4*(i % 16), 11 + 4*(i % 16), ' nt' if nt else '')); k('s_add_u32 s4, s4, 4096')
    k('s_waitcnt vmcnt(0)')
    return k

def build(extra_pre=(), extra_post=()):
    ks = [transpose('t1_kernel', 'win', 640, 1536, WINT), transpose('t2_kernel', 'wout', 768, 640, WOUTT),
          gemm('g1_kernel', ('x', 0), ('ws', WINT), 2048, 1536, 640, Z),
          gemm('ga_kernel', ('x', 0), ('hre', 0), 2048, 640, 640, A_),
          gemm('gb_kernel', ('x', 0), ('him', 0), 2048, 640, 640, B_),
          e1(),
          gemm('g2_kernel', ('wsp', 0), ('ws', Z2T), 2048, 768, 2048, G2),
          gemm('gy1_kernel', ('sre', 0), ('ws', AT), 2048, 640, 2048, Y1),
          gemm('gy2_kernel', ('sim', 0), ('ws', BT), 2048, 640, 2048, Y2),
          e2(),
          gemm('g3_kernel', ('ws', H), ('ws', WOUTT), 2048, 640, 768, OB),
          e3()]
    launches = list(extra_pre) + ks + list(extra_post)
    uniq = {}
    for k in launches: uniq[k.name] = k
    s = HEAD
    for k in launches: s += '; @launch kernel=%s grid=(%d,1,1) block=(%d,1,1) lds=0\n' % (k.name, k.grid, k.block)
    s += '.amdgcn_target "amdgcn-amd-amdhsa--gfx950"\n.text\n'
    for k in uniq.values(): s += k.text()
    s += '.section .rodata,"a"\n'
    for k in uniq.values(): s += k.kd()
    return s

if __name__ == '__main__':
    open('v0.s', 'w').write(build())
    e = empty('empty_kernel')
    open('v0_e20.s', 'w').write(build(extra_post=[e]*20))
    open('v0_e40.s', 'w').write(build(extra_post=[e]*40))
```

```python
from gen_v0 import *
AMP = 20
def spin(k, name):
    k('s_sub_u32 s34, s32, s30'); k('s_mul_i32 s34, s34, %d' % AMP); k('s_min_u32 s34, s34, 100000')
    k('%s_spin:' % name); k('s_memrealtime s[36:37]'); k('s_waitcnt lgkmcnt(0)'); k('s_sub_u32 s35, s36, s32'); k('s_cmp_lt_u32 s35, s34'); k('s_cbranch_scc1 %s_spin' % name)
def probe(name, buf, off, total, twice=False, nt=False):
    k = K(name, 256, block=256)
    k('v_lshlrev_b32 v1, 4, v0')
    k.srd(8, buf, off, total)
    per = total // 256
    for p in range(2 if twice else 1):
        k('s_memrealtime s[30:31]'); k('s_waitcnt lgkmcnt(0)')
        k('s_mul_i32 s4, s2, %d' % per)
        k('s_mov_b32 s5, %d' % (per // 4096 // 2))
        k('%s_l%d:' % (name, p))
        for i in range(2):
            k('buffer_load_dwordx4 v[%d:%d], v1, s[8:11], s4 offen%s' % (8 + 4*(i % 16), 11 + 4*(i % 16), ' nt' if nt else '')); k('s_add_u32 s4, s4, 4096')
        k('s_sub_u32 s5, s5, 1'); k('s_cmp_lg_u32 s5, 0'); k('s_cbranch_scc1 %s_l%d' % (name, p))
        k('s_waitcnt vmcnt(0)')
        k('s_memrealtime s[32:33]'); k('s_waitcnt lgkmcnt(0)')
    spin(k, name)
    return k
def icache(name, nbytes):
    k = K(name, 256, block=256)
    k('s_memrealtime s[30:31]'); k('s_waitcnt lgkmcnt(0)')
    k('.rept %d' % (nbytes // 8)); k('v_add3_u32 v1, v2, v3, v4'); k('.endr')
    k('s_memrealtime s[32:33]'); k('s_waitcnt lgkmcnt(0)')
    spin(k, name)
    return k
W = lambda n, pre: open('work/%s.s' % n, 'w').write(build(extra_pre=pre))
W('p_wsp', [probe('pr_kernel', 'wsp', 0, 8*MB)])
W('p_wsp2', [probe('pr_kernel', 'wsp', 0, 8*MB, twice=True)])
W('p_sre', [probe('pr_kernel', 'sre', 0, 8*MB)])
W('p_ws0', [probe('pr_kernel', 'ws', 128*MB, 8*MB)])
W('p_wsnt', [probe('pr_kernel', 'wsp', 0, 8*MB, nt=True)])
W('p_x', [probe('pr_kernel', 'x', 0, 2*MB)])
W('p_ic16', [icache('pr_kernel', 16384)])
W('p_ic32', [icache('pr_kernel', 32768)])
W('p_ic4', [icache('pr_kernel', 4096)])
```

```python
from gen_v0 import *
AMP = 20
def spin(k, name):
    k('s_sub_u32 s34, s32, s30'); k('s_mul_i32 s34, s34, %d' % AMP); k('s_min_u32 s34, s34, 100000')
    k('%s_spin:' % name); k('s_memrealtime s[36:37]'); k('s_waitcnt lgkmcnt(0)'); k('s_sub_u32 s35, s36, s32'); k('s_cmp_lt_u32 s35, s34'); k('s_cbranch_scc1 %s_spin' % name)
def probe(name, buf, off, total, twice=False, nt=False):
    k = K(name, 256, block=256)
    k('v_lshlrev_b32 v1, 4, v0')
    k.srd(8, buf, off, total)
    per = total // 256
    for p in range(2 if twice else 1):
        k('s_memrealtime s[30:31]'); k('s_waitcnt lgkmcnt(0)')
        k('s_mul_i32 s4, s2, %d' % per)
        k('s_mov_b32 s5, %d' % (per // 4096 // 2))
        k('%s_l%d:' % (name, p))
        for i in range(2):
            k('buffer_load_dwordx4 v[%d:%d], v1, s[8:11], s4 offen%s' % (8 + 4*(i % 16), 11 + 4*(i % 16), ' nt' if nt else '')); k('s_add_u32 s4, s4, 4096')
        k('s_sub_u32 s5, s5, 1'); k('s_cmp_lg_u32 s5, 0'); k('s_cbranch_scc1 %s_l%d' % (name, p))
        k('s_waitcnt vmcnt(0)')
        k('s_memrealtime s[32:33]'); k('s_waitcnt lgkmcnt(0)')
    spin(k, name)
    return k
def icache(name, nbytes):
    k = K(name, 256, block=256)
    k('s_memrealtime s[30:31]'); k('s_waitcnt lgkmcnt(0)')
    k('.rept %d' % (nbytes // 8)); k('v_add3_u32 v1, v2, v3, v4'); k('.endr')
    k('s_memrealtime s[32:33]'); k('s_waitcnt lgkmcnt(0)')
    spin(k, name)
    return k
W = lambda n, pre: open('work/%s.s' % n, 'w').write(build(extra_pre=pre))
W('p_wsp', [probe('pr_kernel', 'wsp', 0, 8*MB)])
W('p_wsp2', [probe('pr_kernel', 'wsp', 0, 8*MB, twice=True)])
W('p_sre', [probe('pr_kernel', 'sre', 0, 8*MB)])
W('p_ws0', [probe('pr_kernel', 'ws', 128*MB, 8*MB)])
W('p_wsnt', [probe('pr_kernel', 'wsp', 0, 8*MB, nt=True)])
W('p_x', [probe('pr_kernel', 'x', 0, 2*MB)])
W('p_ic16', [icache('pr_kernel', 16384)])
W('p_ic32', [icache('pr_kernel', 32768)])
W('p_ic4', [icache('pr_kernel', 4096)])
W('p_ws64a', [probe('pr_kernel', 'ws', 96*MB, 64*MB)])
W('p_ws64b', [probe('pr_kernel', 'ws', 192*MB, 64*MB)])
W('p_ws2', [probe('pr_kernel', 'ws', 128*MB, 2*MB)])
def icache2(name, nbytes, mode):
    k = K(name, 256, block=256)
    if mode in ('pf', 'pfall'):
        k('s_getpc_b64 s[8:9]')
        k('s_mov_b32 s10, %d' % (nbytes + 256)); k('s_mov_b32 s11, 0x20000')
        k('v_lshlrev_b32 v1, 4, v0')
        if mode == 'pf':
            k('s_lshr_b32 s4, s2, 3'); k('s_lshl_b32 s4, s4, 12')
            k('buffer_load_dwordx4 v[8:11], v1, s[8:11], s4 offen')
        else:
            for i in range(nbytes // 4096 + 1):
                k('s_mov_b32 s4, %d' % (4096*i)); k('buffer_load_dwordx4 v[8:11], v1, s[8:11], s4 offen')
        k('s_waitcnt vmcnt(0)')
        k('s_sleep 32')
    if mode == 'twice':
        k('s_mov_b32 s20, 2')
        k('%s_again:' % name)
    k('s_memrealtime s[30:31]'); k('s_waitcnt lgkmcnt(0)')
    k('.rept %d' % (nbytes // 8)); k('v_add3_u32 v1, v2, v3, v4'); k('.endr')
    k('s_memrealtime s[32:33]'); k('s_waitcnt lgkmcnt(0)')
    if mode == 'twice':
        k('s_sub_u32 s20, s20, 1'); k('s_cmp_lg_u32 s20, 0'); k('s_cbranch_scc1 %s_again' % name)
    spin(k, name)
    return k
W('p_icpf', [icache2('pr_kernel', 32768, 'pf')])
W('p_icpfall', [icache2('pr_kernel', 32768, 'pfall')])
W('p_ictw', [icache2('pr_kernel', 32768, 'twice')])
def probe3(name, bufs):
    k = K(name, 256, block=256)
    k('v_lshlrev_b32 v1, 4, v0')
    for j, b in enumerate(bufs): k.srd(8 + 4*j, b[0], b[1], 8*MB)
    per = 8*MB // 256
    k('s_memrealtime s[30:31]'); k('s_waitcnt lgkmcnt(0)')
    k('s_mul_i32 s4, s2, %d' % per)
    k('s_mov_b32 s5, %d' % (per // 4096))
    k('%s_l:' % name)
    for j in range(len(bufs)):
        k('buffer_load_dwordx4 v[%d:%d], v1, s[%d:%d], s4 offen' % (8 + 4*j, 11 + 4*j, 8+4*j, 11+4*j))
    k('s_add_u32 s4, s4, 4096')
    k('s_sub_u32 s5, s5, 1'); k('s_cmp_lg_u32 s5, 0'); k('s_cbranch_scc1 %s_l' % name)
    k('s_waitcnt vmcnt(0)')
    k('s_memrealtime s[32:33]'); k('s_waitcnt lgkmcnt(0)')
    spin(k, name)
    return k
W('p_in24', [probe3('pr_kernel', [('sre', 0), ('sim', 0), ('wsp', 0)])])
W('p_ws24', [probe3('pr_kernel', [('ws', 100*MB), ('ws', 140*MB), ('ws', 200*MB)])])
```

```python
import re, struct

def f2u(x): return struct.unpack('<I', struct.pack('<f', x))[0]
def fh(x): return '0x%08x' % f2u(x)

_REG = re.compile(r'^(?:-|\|)?(?:abs\()?([vas])(?:(\d+)|\[(\d+):(\d+)\])\)?\|?$')
def regs_of(tok):
    tok = tok.strip()
    if tok in ('vcc', 'exec', 'm0'): return [tok]
    if tok in ('vcc_lo', 'vcc_hi'): return ['vcc']
    if tok in ('exec_lo', 'exec_hi'): return ['exec']
    m = _REG.match(tok)
    if not m: return []
    if m.group(2) is not None: return [m.group(1) + m.group(2)]
    return [m.group(1) + str(i) for i in range(int(m.group(3)), int(m.group(4)) + 1)]

TRANS = ('v_exp_f32', 'v_log_f32', 'v_rcp_f32', 'v_rsq_f32', 'v_sqrt_f32', 'v_sin_f32', 'v_cos_f32')

class I:
    def __init__(s, text, needs=(), gives=(), raw=False):
        s.text = text.strip(); s.needs = list(needs); s.gives = list(gives)
        s.rd = set(); s.wr = set(); s.kind = 'other'; s.passes = 0; s.srcC = set(); s.srcAB = set(); s.wide_store = set()
        t = s.text
        if raw or t.endswith(':') or t.startswith('.') or t.startswith(';'):
            s.kind = 'label' if t.endswith(':') else 'raw'; s.op = ''; return
        parts = t.split(None, 1); op = s.op = parts[0]
        rest = parts[1] if len(parts) > 1 else ''
        ops = [o.strip() for o in rest.split(',')] if rest else []
        mods = ''
        if ops:
            rest2 = re.sub(r'\b(op_sel_hi|op_sel|neg_lo|neg_hi|quad_perm):\[[^\]]*\]', '', rest)
            ops = [o.strip() for o in rest2.split(',')]
            last = ops[-1].split()
            if last:
                ops[-1] = last[0]; mods = ' '.join(last[1:])
        R = [regs_of(o) for o in ops]
        allr = lambda L: set(x for r in L for x in r)
        if op.startswith('v_mfma'):
            s.kind = 'mfma'; s.passes = 8 if '32x32x16' in op else 4
            s.wr = set(R[0]); s.srcAB = set(R[1]) | set(R[2]); s.srcC = set(R[3]); s.rd = s.srcAB | s.srcC
        elif op.startswith('buffer_load'):
            if re.search(r'\blds\b', mods):
                s.kind = 'dma'; s.rd = allr(R) | {'m0'}
            else:
                s.kind = 'vload'; s.wr = set(R[0]); s.rd = allr(R[1:])
                if 'd16' in op: s.rd |= s.wr
        elif op.startswith('buffer_store') or op.startswith('buffer_atomic'):
            s.kind = 'vstore'; s.rd = allr(R)
            if 'x4' in op or 'x3' in op: s.wide_store = set(R[0])
        elif op.startswith('ds_read'):
            s.kind = 'dsr'; s.wr = set(R[0]); s.rd = allr(R[1:])
        elif op.startswith('ds_write'):
            s.kind = 'dsw'; s.rd = allr(R)
        elif op in ('s_load_dword', 's_load_dwordx2', 's_load_dwordx4', 's_load_dwordx8', 's_memtime', 's_memrealtime'):
            s.kind = 'smem'; s.wr = set(R[0]); s.rd = allr(R[1:])
        elif op == 's_barrier': s.kind = 'barrier'
        elif op == 's_waitcnt': s.kind = 'wait'
        elif op == 's_nop': s.kind = 'nop'
        elif op.startswith('s_cbranch') or op == 's_branch' or op == 's_endpgm':
            s.kind = 'branch'
            if 'vcc' in op: s.rd = {'vcc'}
        elif op in ('s_sleep', 's_setprio'): s.kind = 'salu'
        elif op.startswith('s_cmp'):
            s.kind = 'salu'; s.rd = allr(R)
        elif op.startswith('s_'):
            s.kind = 'salu'; s.wr = set(R[0]); s.rd = allr(R[1:])
        elif op.startswith('v_'):
            s.kind = 'trans' if op.replace('_e32', '').replace('_e64', '') in TRANS else 'valu'
            if 'permlane' in op or op.startswith('v_swap'):
                s.wr = allr(R); s.rd = allr(R)
            else:
                s.wr = set(R[0]); s.rd = allr(R[1:])
                if op.startswith('v_fmac') or op.startswith('v_pk_fmac') or '_dpp' in op or op.startswith('v_dot2c'): s.rd |= s.wr
                if op.startswith('v_cndmask') and len(ops) == 3: s.rd.add('vcc')
        else:
            raise ValueError('unknown instruction: ' + t)
    def cost(s):
        k = s.kind
        if k in ('label', 'raw'): return 0
        if k == 'trans': return 8
        if k == 'mfma': return 8
        if k == 'nop': return 4 * (int(s.text.split()[1]) + 1)
        if k == 'dsw': return 16 if 'b128' in s.op else 8
        return 4

def isv(r): return r[0] in 'va' and r not in ('vcc',)
def iss(r): return (r[0] == 's') or r == 'vcc'

def hazard(p, c):
    n = 0
    pv = p.kind in ('valu', 'trans')
    cv = c.kind in ('valu', 'trans')
    cmem = c.kind in ('dma', 'vload', 'vstore')
    if pv:
        wv = set(r for r in p.wr if isv(r)); ws = set(r for r in p.wr if iss(r))
        if c.kind == 'mfma' and wv & c.rd: n = max(n, 2)
        if cv and ('permlane' in c.op or '_dpp' in c.op) and wv & c.rd: n = max(n, 2)
        if cv and c.op.startswith('v_read') and wv & c.rd: n = max(n, 1)
        if p.kind == 'trans' and c.kind == 'valu' and wv & c.rd: n = max(n, 1)
        if p.kind == 'trans' and c.kind in ('mfma', 'vstore', 'dsw') and wv & c.rd: n = max(n, 2)
        if cv and ws & c.rd: n = max(n, 4 if c.op.startswith('v_read') or c.op.startswith('v_write') else 2)
        if cmem and ws & c.rd: n = max(n, 5)
        if c.kind in ('salu', 'branch') and ws & c.rd: n = max(n, 1)
    if p.kind == 'mfma':
        d = 12 if p.passes == 8 else 8
        if c.kind == 'mfma':
            if p.wr & c.srcAB: n = max(n, d)
            if p.wr & c.srcC and not (p.wr == c.srcC and p.passes == c.passes): n = max(n, 10 if p.passes == 8 else 6)
            if p.wr & c.wr and not (p.wr == c.srcC and p.passes == c.passes): n = max(n, 10 if p.passes == 8 else 6)
        elif c.kind in ('valu', 'trans', 'vload', 'vstore', 'dma', 'dsr', 'dsw'):
            if p.wr & (c.rd | c.wr): n = max(n, d)
            if p.srcC & c.wr: n = max(n, 7 if p.passes == 8 else 3)
    if p.kind == 'salu' and 'm0' in p.wr and c.kind == 'dma': n = max(n, 1)
    if p.wide_store and p.wide_store & c.wr: n = max(n, 2)
    return n

class Prog:
    def __init__(s): s.groups = []
    def __call__(s, text, needs=(), gives=()):
        g = []
        lines = [l for l in text.split('\n') if l.strip()]
        for k, l in enumerate(lines):
            g.append(I(l, needs if k == 0 else (), gives if k == len(lines) - 1 else ()))
        s.groups.append(g); return g
    def group(s, insts): s.groups.append(list(insts))
    def extend(s, other): s.groups.extend(other.groups if isinstance(other, Prog) else other)
    def time(s): return est_time(s.groups)

def est_time(groups):
    t = 0; mf = 0
    for g in groups:
        for i in g:
            if i.kind == 'mfma':
                t = max(t, mf); mf = t + 4 * i.passes
            t += i.cost()
    return t

def merge(main, bg, start=0, period=None, end=None):
    main = main.groups if isinstance(main, Prog) else main
    bg = list(bg.groups if isinstance(bg, Prog) else bg)
    total = est_time(main)
    if period is None:
        period = max(1, ((end if end is not None else total) - start) / max(1, len(bg)))
    out = []; t = 0; mf = 0; due = start; k = 0
    for g in main:
        while k < len(bg) and t >= due:
            out.append(bg[k]); k += 1; due += period
        out.append(g)
        for i in g:
            if i.kind == 'mfma':
                t = max(t, mf); mf = t + 4 * i.passes
            t += i.cost()
    out.extend(bg[k:])
    p = Prog(); p.groups = out; return p

def finalize(groups, verbose=False):
    groups = groups.groups if isinstance(groups, Prog) else groups
    out = []; hist = []
    vm = []; lg = []
    given = {}
    smem_out = False
    stats = dict(nops=0, waits=0)
    def emit(i):
        out.append(i.text if i.kind in ('label',) else '    ' + i.text)
        if i.kind in ('label', 'raw'): return
        hist.append((i, int(i.text.split()[1]) + 1 if i.kind == 'nop' else 1))
        if len(hist) > 24: del hist[0]
    for g in groups:
        for i in g:
            if i.kind == 'raw' and i.text.startswith(';!drain'):
                vm.clear(); lg.clear(); smem_out = False; continue
            if i.kind in ('label', 'raw'):
                emit(i); continue
            if i.kind == 'wait':
                m = re.search(r'vmcnt\((\d+)\)', i.text)
                if m: del vm[:max(0, len(vm) - int(m.group(1)))]
                m = re.search(r'lgkmcnt\((\d+)\)', i.text)
                if m:
                    n = int(m.group(1))
                    if n == 0: lg.clear(); smem_out = False
                    elif not smem_out: del lg[:max(0, len(lg) - n)]
                emit(i); continue
            touch = i.rd | i.wr
            need = set()
            for tok in i.needs:
                assert tok in given, 'token %s needed by "%s" not given yet' % (tok, i.text)
                need.update(id(x) for x in given[tok])
            def dep(q):
                k = -1
                for n_, o in enumerate(q):
                    if id(o) in need or (o.wr & touch): k = n_
                return k
            kv = dep(vm); kl = dep(lg)
            w = []
            if kv >= 0:
                n = len(vm) - 1 - kv; n = min(n, 63); w.append('vmcnt(%d)' % n); del vm[:len(vm) - n]
            if kl >= 0:
                n = 0 if smem_out else min(len(lg) - 1 - kl, 15)
                w.append('lgkmcnt(%d)' % n); del lg[:len(lg) - n]
                if n == 0: smem_out = False
            if w:
                emit(I('s_waitcnt ' + ' '.join(w))); stats['waits'] += 1
            dist = 0; pad = 0
            for (p, st) in reversed(hist):
                h = hazard(p, i)
                if h > dist: pad = max(pad, h - dist)
                dist += st
                if dist >= 20: break
            while pad > 0:
                n = min(pad, 16); emit(I('s_nop %d' % (n - 1))); pad -= n; stats['nops'] += 1
            emit(i)
            if i.kind in ('dma', 'vload', 'vstore'):
                vm.append(i)
                assert len(vm) <= 200
            if i.kind in ('dsr', 'dsw'): lg.append(i)
            if i.kind == 'smem': lg.append(i); smem_out = True
            for tok in i.gives: given.setdefault(tok, []).append(i)
    if verbose: print('finalize:', stats, 'lines', len(out))
    return out

class RA:
    def __init__(s, lo, hi, pre='v'): s.free_ = set(range(lo, hi)); s.pre = pre; s.hw = lo; s.names = {}
    def alloc(s, n=1, align=None, name=None):
        align = align or (2 if n > 1 else 1)
        for b in sorted(s.free_):
            if b % align == 0 and all((b + k) in s.free_ for k in range(n)):
                for k in range(n): s.free_.discard(b + k)
                s.hw = max(s.hw, b + n); return b
        raise RuntimeError('out of registers (%s, n=%d, free=%d)' % (name, n, len(s.free_)))
    def free(s, b, n=1):
        for k in range(n):
            assert (b + k) not in s.free_; s.free_.add(b + k)

def vr(b, n=1, p='v'): return '%s%d' % (p, b) if n == 1 else '%s[%d:%d]' % (p, b, b + n - 1)
def ar(b, n=1): return vr(b, n, 'a')
def sr(b, n=1): return vr(b, n, 's')
```

```python
import sys, math
from asmlib import *

NAME = 'gated_mix__spectral_fnet__mixer_gmlp__prompt_kernel'
HEAD = open('gated_mix__spectral_fnet__mixer_gmlp__prompt.s.ref').read().split('; Override launch')[0]
MB = 1 << 20
EPOCH, ZF, UF, PF, HF, ST = 0, 4096, 8192, 12288, 16384, 65536
Z2, H, U, WZ1, WO, TS = 1 * MB, 4 * MB, 8 * MB, 14 * MB, 15 * MB, 32 * MB
WS_SIZE = 40 * MB
PSZ = 20480; S = 81920; SLOT = 12288; M = 143360; LDS_SIZE = 163840
WD = S; WDP = 16384; CP = S + 36864; CPP = 7680; GW = M; RED = S; UL = M; WO0 = S + 32768
SRD = dict(x=4, win=8, wsp=12, wout=16, hre=20, him=24, sre=28, sim=32, out=36, ws=40, bsp=44, gw=48, code=52)
KOFF = dict(x=0, sre=8, sim=16, hre=24, him=32, win=48, wsp=56, bsp=64, wout=72, gw=80, out=88, ws=104)
SZ = dict(x=2048*640*2, sre=2048*2048*2, sim=2048*2048*2, hre=640*640*2, him=640*640*2, win=640*1536*2, wsp=2048*2048*2,
          bsp=4096, wout=768*640*2, gw=1280, out=2048*640*2, ws=WS_SIZE)
def srd(n): return sr(SRD[n], 4)
sRB, sCB, sW, sTAG, sEP, sP = 56, 57, 58, 59, 60, 61
sX, sWZ, sW1, sT0, sT1, sT2, sT3 = 62, 63, 64, 65, 66, 67, 68
sS = 69
sZ, sHB, sF, sTT, sC5120, sCNT, sWDO, sOO, sUD, sUM = 73, 74, 75, 76, 77, 78, 79, 80, 81, 82
sBG = 83
sTS = 84

class Gen:
    def __init__(g, opt):
        g.opt = opt; g.ra = RA(1, 256); g.slow = []; g.npoll = 0; g.nts = 0
    def A(g, n=1, align=None): return g.ra.alloc(n, align)
    def F(g, b, n=1):
        if g.holding is not None: g.holding.append((b, n))
        else: g.ra.free(b, n)
    holding = None
    def hold(g): g.holding = []
    def unhold(g):
        h = g.holding; g.holding = None; return h
    def release(g, h):
        for b, n in h: g.ra.free(b, n)
    def ts(g, P, label):
        if not g.opt.get('ts'): return
        k = g.nts; g.nts += 1; g.ts_labels.append(label)
        assert k < 9
        P('s_memrealtime %s' % sr(sTS + 2 * k, 2))
    ts_labels = []

    def dma(g, P, vaddr, buf, soff, lds, imm=0, needs=(), gives=(), private=True, pre=None, flags=''):
        t = []
        if lds - imm < 0:
            assert pre is None
            pre = 's_add_u32 s52, %s, %d' % (soff, imm); soff = 's52'; imm = 0
        if private: t.append('s_add_u32 m0, %s, %d' % (sr(sP), lds - imm))
        else: t.append('s_mov_b32 m0, %d' % (lds - imm))
        if pre: t.append(pre)
        grp = [I(x) for x in t]
        grp.append(I('buffer_load_dwordx4 %s, %s, %s offen%s%s lds' % (vr(vaddr), srd(buf), soff, ' offset:%d' % imm if imm else '', flags), needs, gives))
        P.group(grp)
    def poll_issue(g, P, regs, loads):
        for l in loads: P(l)
    def poll_check(g, P, loads, cmpcode, gives=()):
        n = g.npoll; g.npoll += 1
        grp = [I(x) for x in cmpcode] + [I('s_cbranch_vccnz L_slow%d' % n), I('L_back%d:' % n)]
        P.group(grp)
        if gives: P('s_nop 0', gives=gives)
        s = ['L_slow%d:' % n, 's_mov_b32 %s, 200000' % sr(sCNT), 'L_sl%d:' % n, 's_sleep %d' % g.opt.get('pollsleep', 4)] + list(loads) + ['s_waitcnt vmcnt(0)']
        for c in cmpcode: s += [c, 's_nop 1']
        s += ['s_cbranch_vccz L_back%d' % n, 's_sub_u32 %s, %s, 1' % (sr(sCNT), sr(sCNT)), 's_cmp_lg_u32 %s, 0' % sr(sCNT), 's_cbranch_scc1 L_sl%d' % n, 's_branch L_back%d' % n]
        g.slow += s
    def flag_store(g, P, soff_code, needs):
        grp = [I(x) for x in soff_code]
        grp += [I('s_mov_b64 exec, 1', needs), I('buffer_store_dword %s, %s, %s, %s offen sc1' % (vr(g.vTAG), vr(g.vZERO), srd('ws'), sr(sT3))), I('s_mov_b64 exec, -1')]
        P.group(grp)
    def xreduce(g, P, v, t):
        P('v_mov_b32 %s, %s' % (vr(t), vr(v))); P('v_permlane32_swap_b32 %s, %s' % (vr(t), vr(v))); P('v_add_f32 %s, %s, %s' % (vr(v), vr(v), vr(t)))
        P('v_mov_b32 %s, %s' % (vr(t), vr(v))); P('v_permlane16_swap_b32 %s, %s' % (vr(t), vr(v))); P('v_add_f32 %s, %s, %s' % (vr(v), vr(v), vr(t)))
    def gelu(g, P, x, n):
        C = vr(g.vGC, 2)
        B = 4
        t = g.A(2 * B)
        for p0 in range(0, n // 2, B):
            prs = range(p0, min(p0 + B, n // 2))
            X = lambda p: vr(x + 2 * p, 2); T = lambda p: vr(t + 2 * (p - p0), 2)
            for p in prs: P('v_pk_mul_f32 %s, %s, %s' % (T(p), X(p), X(p)))
            for p in prs: P('v_pk_fma_f32 %s, %s, %s, %s op_sel:[0,1,0] op_sel_hi:[1,1,0]' % (T(p), T(p), C, C))
            for p in prs: P('v_pk_mul_f32 %s, %s, %s' % (T(p), T(p), X(p)))
            for p in prs:
                for h in range(2): P('v_exp_f32 %s, %s' % (vr(t + 2 * (p - p0) + h), vr(t + 2 * (p - p0) + h)))
            for p in prs: P('v_pk_add_f32 %s, %s, 1.0 op_sel_hi:[1,0]' % (T(p), T(p)))
            for p in prs:
                for h in range(2): P('v_rcp_f32 %s, %s' % (vr(t + 2 * (p - p0) + h), vr(t + 2 * (p - p0) + h)))
            for p in prs: P('v_pk_mul_f32 %s, %s, %s' % (X(p), X(p), T(p)))
        g.F(t, 2 * B)

    def prologue(g):
        P = Prog()
        P('s_cmp_ge_u32 s2, 256\ns_cbranch_scc1 L_end')
        for n in ('x', 'win', 'ws', 'gw', 'bsp', 'wsp', 'hre', 'him', 'sre', 'sim', 'wout', 'out'):
            P('s_load_dwordx2 %s, s[0:1], %d' % (sr(SRD[n], 2), KOFF[n]))
        g.ts(P, 'start')
        t0 = g.A(); t1 = g.A(); t2 = g.A()
        P('v_lshrrev_b32 %s, 6, v0' % vr(t0)); P('v_and_b32 v0, 63, v0'); P('v_readfirstlane_b32 %s, %s' % (sr(sW), vr(t0)))
        g.vL16 = g.A(); P('v_lshlrev_b32 %s, 4, v0' % vr(g.vL16))
        c = SRD['code']
        P('s_getpc_b64 %s' % sr(c, 2)); P('s_mov_b32 %s, L_end-%s-256' % (sr(c + 2), NAME)); P('s_mov_b32 %s, 0x20000' % sr(c + 3))
        P('s_lshr_b32 %s, s2, 3' % sr(sT0)); P('s_lshl_b32 %s, %s, 2' % (sr(sT1), sr(sT0))); P('s_add_u32 %s, %s, %s' % (sr(sT1), sr(sT1), sr(sW))); P('s_lshl_b32 %s, %s, 10' % (sr(sT1), sr(sT1)))
        g.vJ = g.A(4, 4)
        if g.opt.get('codepf', 1): P('buffer_load_dwordx4 %s, %s, %s, %s offen' % (vr(g.vJ, 4), vr(g.vL16), srd('code'), sr(sT1)))
        P('s_and_b32 %s, s2, 1' % sr(sCB)); P('s_lshl_b32 %s, %s, 2' % (sr(sCB), sr(sCB))); P('s_and_b32 %s, %s, 3' % (sr(sT1), sr(sT0))); P('s_add_u32 %s, %s, %s' % (sr(sCB), sr(sCB), sr(sT1)))
        P('s_and_b32 %s, s2, 6' % sr(sRB)); P('s_lshl_b32 %s, %s, 2' % (sr(sRB), sr(sRB))); P('s_lshr_b32 %s, %s, 2' % (sr(sT1), sr(sT0))); P('s_add_u32 %s, %s, %s' % (sr(sRB), sr(sRB), sr(sT1)))
        P('s_mul_i32 %s, %s, %d' % (sr(sP), sr(sW), PSZ))
        P('s_mul_i32 %s, %s, 1280' % (sr(sX), sr(sRB))); P('s_mul_i32 %s, %s, %d' % (sr(sT1), sr(sW), 16 * 40960)); P('s_add_u32 %s, %s, %s' % (sr(sX), sr(sX), sr(sT1)))
        P('s_mul_i32 %s, %s, 192' % (sr(sW1), sr(sCB))); P('s_add_u32 %s, %s, 1536' % (sr(sWZ), sr(sW1)))
        for n in ('x', 'win'):
            P('s_mov_b32 %s, %d' % (sr(SRD[n] + 2), SZ[n])); P('s_mov_b32 %s, 0x20000' % sr(SRD[n] + 3))
        g.vG = g.A(); g.vI = g.A()
        P('v_lshrrev_b32 %s, 4, v0' % vr(g.vG)); P('v_and_b32 %s, 15, v0' % vr(g.vI))
        g.vXD = [g.A(), g.A()]
        P('v_lshrrev_b32 %s, 3, v0' % vr(t0)); P('v_mul_u32_u24 %s, 40960, %s' % (vr(t0), vr(t0)))
        P('v_and_b32 %s, 7, v0' % vr(t1)); P('v_xor_b32 %s, %s, %s' % (vr(t1), vr(t1), vr(g.vG))); P('v_lshl_add_u32 %s, %s, 4, %s' % (vr(g.vXD[0]), vr(t1), vr(t0)))
        P('v_xor_b32 %s, 64, %s' % (vr(t0), vr(g.vXD[0]))); P('v_add_u32 %s, 327680, %s' % (vr(g.vXD[1]), vr(t0)))
        g.vWD = [g.A(), g.A(), g.A()]
        P('s_mul_i32 %s, %s, 192' % (sr(sT1), sr(sW)))
        for v in range(3):
            P('v_add_u32 %s, %s, v0' % (vr(t0), sr(sT1)))
            if v: P('v_add_u32 %s, %d, %s' % (vr(t0), 64 * v, vr(t0)))
            P('v_mul_u32_u24 %s, 5462, %s' % (vr(t1), vr(t0))); P('v_lshrrev_b32 %s, 16, %s' % (vr(t1), vr(t1)))
            P('v_mul_u32_u24 %s, 12, %s' % (vr(t2), vr(t1))); P('v_sub_u32 %s, %s, %s' % (vr(t0), vr(t0), vr(t2)))
            P('v_lshrrev_b32 %s, 2, %s' % (vr(t2), vr(t1))); P('v_and_b32 %s, 2, %s' % (vr(t2), vr(t2))); P('v_xor_b32 %s, %s, %s' % (vr(t0), vr(t0), vr(t2)))
            P('v_mul_u32_u24 %s, 3072, %s' % (vr(t1), vr(t1))); P('v_lshl_add_u32 %s, %s, 4, %s' % (vr(g.vWD[v]), vr(t0), vr(t1)))
        P('s_mul_i32 %s, %s, 3072' % (sr(sWDO), sr(sW))); P('s_add_u32 %s, %s, %d' % (sr(sWDO), sr(sWDO), S))
        for n in ('ws', 'gw', 'bsp', 'wsp', 'hre', 'him', 'sre', 'sim', 'wout', 'out'):
            P('s_mov_b32 %s, %d' % (sr(SRD[n] + 2), SZ[n])); P('s_mov_b32 %s, 0x20000' % sr(SRD[n] + 3))
        P('s_waitcnt lgkmcnt(0)')
        P('s_load_dword %s, %s, %d' % (sr(sEP), sr(SRD['ws'], 2), EPOCH))
        g.F(t0); g.F(t1); g.F(t2)
        return P

    def chunk_loads(g, ch):
        P = Prog()
        need = ['bar%d' % (ch - 4)] if ch >= 5 else []
        if ch < 10:
            for hf in range(2):
                g.dma(P, g.vXD[hf], 'x', sr(sX), 2048 * ch + 1024 * hf, imm=128 * ch, gives=['x%d' % ch])
        base = sWZ if ch < 10 else sW1
        for v in range(3):
            grp = [I('s_add_u32 m0, %s, %d' % (sr(sWDO), SLOT * (ch % 5) + 1024 * v))]
            grp.append(I('s_add_u32 %s, %s, %d' % (sr(sBG), sr(base), 196608 * (ch % 10))))
            grp.append(I('buffer_load_dwordx4 %s, %s, %s offen lds' % (vr(g.vWD[v]), srd('win'), sr(sBG)), need, ['w%d' % ch]))
            P.group(grp)
        return P

    def setup2(g):
        P = Prog(); t0 = g.A(); t1 = g.A()
        g.vXR = [g.A(), g.A()]
        P('v_lshrrev_b32 %s, 1, %s' % (vr(t0), vr(g.vI))); P('v_xor_b32 %s, %s, %s' % (vr(t0), vr(t0), vr(g.vG))); P('v_lshlrev_b32 %s, 4, %s' % (vr(t0), vr(t0)))
        g.vSWZ = g.A(); P('v_mov_b32 %s, %s' % (vr(g.vSWZ), vr(t0)))
        P('v_lshl_add_u32 %s, %s, 7, %s' % (vr(t0), vr(g.vI), vr(t0))); P('v_add_u32 %s, %s, %s' % (vr(g.vXR[0]), sr(sP), vr(t0))); P('v_xor_b32 %s, 64, %s' % (vr(g.vXR[1]), vr(g.vXR[0])))
        g.vTA = [g.A(), g.A()]
        P('v_bfe_u32 %s, v0, 2, 2' % vr(t0)); P('v_lshl_add_u32 %s, %s, 3, %s' % (vr(t0), vr(g.vG), vr(t0))); P('v_mul_u32_u24 %s, 192, %s' % (vr(t0), vr(t0)))
        P('v_and_b32 %s, 3, v0' % vr(t1)); P('v_lshl_add_u32 %s, %s, 3, %s' % (vr(t0), vr(t1), vr(t0))); P('v_add_u32 %s, %d, %s' % (vr(t0), S, vr(t0)))
        P('v_and_b32 %s, 1, %s' % (vr(t1), vr(g.vG))); P('v_lshlrev_b32 %s, 5, %s' % (vr(t1), vr(t1)))
        P('v_add_u32 %s, %s, %s' % (vr(g.vTA[0]), vr(t0), vr(t1))); P('v_sub_u32 %s, %s, %s' % (vr(g.vTA[1]), vr(t0), vr(t1)))
        g.F(t0); g.F(t1)
        return P

    def setup3(g):
        P = Prog(); t0 = g.A(); t1 = g.A()
        g.vZERO = g.A(); P('v_mov_b32 %s, 0' % vr(g.vZERO))
        g.vTAG = g.A()
        P('s_add_u32 %s, %s, 1' % (sr(sT0), sr(sEP))); P('s_mul_i32 %s, %s, 0x9E3779B1' % (sr(sT0), sr(sT0))); P('s_xor_b32 %s, %s, 0x5bd1e995' % (sr(sTAG), sr(sT0)))
        P('v_mov_b32 %s, %s' % (vr(g.vTAG), sr(sTAG)))
        g.vGC = g.A(2)
        c1 = -2 * math.log2(math.e) * math.sqrt(2 / math.pi)
        P('v_mov_b32 %s, %s' % (vr(g.vGC), fh(c1))); P('v_mov_b32 %s, %s' % (vr(g.vGC + 1), fh(c1 * 0.044715)))
        P.group([I('s_mul_i32 %s, %s, 320' % (sr(sT0), sr(sW))), I('s_add_u32 m0, %s, %d' % (sr(sT0), GW)), I('s_mov_b64 exec, 0xfffff'),
                 I('buffer_load_dwordx4 %s, %s, %s offen lds' % (vr(g.vL16), srd('gw'), sr(sT0)), gives=['gw']), I('s_mov_b64 exec, -1')])
        g.vB = g.A()
        P('v_lshlrev_b32 %s, 6, %s' % (vr(t0), vr(g.vI)))
        P.group([I('s_lshl_b32 %s, %s, 10' % (sr(sT0), sr(sW))), I('s_lshl_b32 %s, %s, 1' % (sr(sT1), sr(sRB))), I('s_add_u32 %s, %s, %s' % (sr(sT0), sr(sT0), sr(sT1))),
                 I('buffer_load_ushort %s, %s, %s, %s offen' % (vr(g.vB), vr(t0), srd('bsp'), sr(sT0)))])
        g.vSD = [g.A() for _ in range(4)]
        for u in range(4):
            P('v_add_u32 %s, %d, %s' % (vr(t0), 4 * u, vr(g.vG))); P('v_xor_b32 %s, %s, %s' % (vr(t1), vr(t0), vr(g.vI)))
            P('v_lshlrev_b32 %s, 17, %s' % (vr(t0), vr(t0))); P('v_lshl_add_u32 %s, %s, 4, %s' % (vr(g.vSD[u]), vr(t1), vr(t0)))
        P.group([I('s_lshl_b32 %s, %s, 12' % (sr(sT0), sr(sRB))), I('s_lshl_b32 %s, %s, 10' % (sr(sT1), sr(sW))), I('s_add_u32 %s, %s, %s' % (sr(sS), sr(sT0), sr(sT1)))] +
                [I('s_add_u32 %s, %s, %d' % (sr(sS + k), sr(sS), 16 * 131072 * k)) for k in range(1, 4)])
        g.vSR = [g.A() for _ in range(8)]
        P('v_lshrrev_b32 %s, 5, v0' % vr(t0)); P('v_lshlrev_b32 %s, 2, %s' % (vr(t0), vr(t0))); P('v_xor_b32 %s, %s, %s' % (vr(t0), vr(t0), vr(g.vI))); P('v_lshlrev_b32 %s, 4, %s' % (vr(t0), vr(t0)))
        P('v_and_b32 %s, 31, v0' % vr(t1)); P('v_lshl_add_u32 %s, %s, 8, %s' % (vr(t0), vr(t1), vr(t0))); P('v_add_u32 %s, %s, %s' % (vr(g.vSR[0]), sr(sP), vr(t0)))
        for j in range(1, 8): P('v_xor_b32 %s, %d, %s' % (vr(g.vSR[j]), 16 * (8 * (j >> 2) + (j & 3)), vr(g.vSR[0])))
        g.vFT = g.A(); P('v_lshlrev_b32 %s, 17, %s' % (vr(t0), vr(g.vI))); P('v_lshl_add_u32 %s, %s, 4, %s' % (vr(g.vFT), vr(g.vG), vr(t0)))
        P.group([I('s_lshl_b32 %s, %s, 21' % (sr(sF), sr(sW))), I('s_lshl_b32 %s, %s, 12' % (sr(sT0), sr(sRB))), I('s_add_u32 %s, %s, %s' % (sr(sTT), sr(sF), sr(sT0)))])
        P('s_mov_b32 %s, 5120' % sr(sC5120))
        g.vZS = g.A(); P('v_lshlrev_b32 %s, 6, %s' % (vr(t0), vr(g.vI))); P('v_lshl_add_u32 %s, %s, 4, %s' % (vr(g.vZS), vr(g.vG), vr(t0)))
        P.group([I('s_mul_i32 %s, %s, 12' % (sr(sT0), sr(sCB))), I('s_add_u32 %s, %s, %s' % (sr(sT0), sr(sT0), sr(sW))), I('s_lshl_b32 %s, %s, 15' % (sr(sT0), sr(sT0))), I('s_add_u32 %s, %s, %d' % (sr(sZ), sr(sT0), Z2))])
        P.group([I('s_lshl_b32 %s, %s, 2' % (sr(sT0), sr(sRB))), I('s_add_u32 %s, %s, %s' % (sr(sT0), sr(sT0), sr(sW))), I('s_mul_i32 %s, %s, 24576' % (sr(sT0), sr(sT0))), I('s_add_u32 %s, %s, %d' % (sr(sHB), sr(sT0), H))])
        g.vDD = [g.A() for _ in range(4)]; t2 = g.A()
        for v in range(4):
            P.group([I('s_lshl_b32 %s, %s, 8' % (sr(sT0), sr(sW))), I('s_add_u32 %s, %s, %d' % (sr(sT0), sr(sT0), 64 * v)), I('v_add_u32 %s, %s, v0' % (vr(t0), sr(sT0)))])
            P('v_mul_u32_u24 %s, 2731, %s' % (vr(t1), vr(t0))); P('v_lshrrev_b32 %s, 16, %s' % (vr(t1), vr(t1)))
            P('v_mul_u32_u24 %s, 24, %s' % (vr(t2), vr(t1))); P('v_sub_u32 %s, %s, %s' % (vr(t0), vr(t0), vr(t2)))
            P('v_bfe_u32 %s, %s, 1, 3' % (vr(t2), vr(t1))); P('v_xor_b32 %s, %s, %s' % (vr(t0), vr(t0), vr(t2)))
            P('v_mul_u32_u24 %s, 1280, %s' % (vr(t1), vr(t1))); P('v_lshl_add_u32 %s, %s, 4, %s' % (vr(g.vDD[v]), vr(t0), vr(t1)))
        g.F(t0); g.F(t1); g.F(t2)
        return P

    def gemm1(g, ch0, acc, extra_loads, first_bar_needs=()):
        P = Prog(); isz = ch0 == 0
        af = [g.A(24, 4), g.A(24, 4)]
        def reads(ks):
            L = []; ch = ch0 + (ks >> 1); ksl = ks & 1; tok = ['rd%d' % ch]
            if isz: L.append([I('ds_read_b128 %s, %s offset:%d' % (vr(g.xf + 4 * ks, 4), vr(g.vXR[ksl]), 2048 * (ks >> 1)), ['x%d' % ch], ['xread'])])
            for b in range(6):
                for kk in range(2):
                    L.append([I('ds_read_b64_tr_b16 %s, %s offset:%d' % (vr(af[ks & 1] + 4 * b + 2 * kk, 2), vr(g.vTA[b & 1]), SLOT * (ch % 5) + 192 * (32 * ksl + 4 * kk) + 32 * b), ['bar%d' % ch], tok)])
            return L
        def mfmas(ks):
            return [[I('v_mfma_f32_16x16x32_bf16 %s, %s, %s, %s' % (vr(acc + 4 * b, 4), vr(af[ks & 1] + 4 * b, 4), vr(g.xf + 4 * ks, 4), vr(acc + 4 * b, 4) if ks else '0'))] for b in range(6)]
        def mix(a, b, c=()):
            out = []; b = list(b); c = list(c); n = max(len(a), 1)
            for k in range(n):
                if k < len(a): out.append(a[k])
                nb = -(-len(b) // (n - k)); out += b[:nb]; b = b[nb:]
                nc = -(-len(c) // (n - k)); out += c[:nc]; c = c[nc:]
            return out
        for c in range(10):
            ch = ch0 + c
            needs = ['w%d' % ch] + (['rd%d' % (ch - 1)] if ch > 0 else []) + (list(first_bar_needs) if c == 0 else [])
            P('s_barrier', needs=needs, gives=['bar%d' % ch])
            ld = []
            if ch + 4 < 20: ld += g.chunk_loads(ch + 4).groups
            if ch in extra_loads: ld += extra_loads[ch].groups
            h = (len(ld) + 1) // 2
            P.extend(mix(mfmas(2 * c - 1) if c else [], reads(2 * c), ld[:h]))
            P.extend(mix(mfmas(2 * c), reads(2 * c + 1), ld[h:]))
        P.extend(mfmas(19))
        g.F(af[0], 24); g.F(af[1], 24)
        return P

    def stats_publish(g, zz):
        P = Prog(); s = g.A(4, 4); q = g.A(2); t = g.A()
        P('v_pk_add_f32 %s, %s, %s' % (vr(s, 2), vr(zz, 2), vr(zz + 2, 2))); P('v_pk_mul_f32 %s, %s, %s' % (vr(q, 2), vr(zz, 2), vr(zz, 2)))
        P('v_pk_fma_f32 %s, %s, %s, %s' % (vr(q, 2), vr(zz + 2, 2), vr(zz + 2, 2), vr(q, 2)))
        for p in range(2, 12):
            P('v_pk_add_f32 %s, %s, %s' % (vr(s, 2), vr(s, 2), vr(zz + 2 * p, 2))); P('v_pk_fma_f32 %s, %s, %s, %s' % (vr(q, 2), vr(zz + 2 * p, 2), vr(zz + 2 * p, 2), vr(q, 2)))
        P('v_add_f32 %s, %s, %s' % (vr(s), vr(s), vr(s + 1))); P('v_add_f32 %s, %s, %s' % (vr(s + 2), vr(q), vr(q + 1)))
        g.xreduce(P, s, t); g.xreduce(P, s + 2, t)
        P('v_mov_b32 %s, %s' % (vr(s + 1), sr(sTAG))); P('v_mov_b32 %s, %s' % (vr(s + 3), sr(sTAG)))
        P.group([I('s_lshl_b32 %s, %s, 2' % (sr(sT0), sr(sRB))), I('s_add_u32 %s, %s, %s' % (sr(sT0), sr(sT0), sr(sW))), I('s_lshl_b32 %s, %s, 11' % (sr(sT0), sr(sT0))),
                 I('s_add_u32 %s, %s, %d' % (sr(sOO), sr(sT0), ST)), I('s_lshl_b32 %s, %s, 8' % (sr(sT1), sr(sCB))), I('s_add_u32 %s, %s, %s' % (sr(sT0), sr(sOO), sr(sT1))),
                 I('s_mov_b64 exec, 0xffff'), I('buffer_store_dwordx4 %s, %s, %s, %s offen sc1' % (vr(s, 4), vr(g.vL16), srd('ws'), sr(sT0))), I('s_mov_b64 exec, -1')])
        g.F(s, 4); g.F(q, 2); g.F(t)
        return P

    def stats_loads(g):
        return ['buffer_load_dwordx4 %s, %s, %s, %s offen sc1' % (vr(g.vST, 4), vr(g.vL16), srd('ws'), sr(sOO)),
                'buffer_load_dwordx4 %s, %s, %s, %s offen offset:1024 sc1' % (vr(g.vST + 4, 4), vr(g.vL16), srd('ws'), sr(sOO))]
    def normalize(g, zz):
        P = Prog(); st = g.vST; t = g.A(2)
        cmpc = ['v_xor_b32 %s, %s, %s' % (vr(t), sr(sTAG), vr(st + 1)), 'v_xor_b32 %s, %s, %s' % (vr(t + 1), sr(sTAG), vr(st + 3)), 'v_or_b32 %s, %s, %s' % (vr(t), vr(t), vr(t + 1)),
                'v_xor_b32 %s, %s, %s' % (vr(t + 1), sr(sTAG), vr(st + 5)), 'v_or_b32 %s, %s, %s' % (vr(t), vr(t), vr(t + 1)),
                'v_xor_b32 %s, %s, %s' % (vr(t + 1), sr(sTAG), vr(st + 7)), 'v_or_b32 %s, %s, %s' % (vr(t), vr(t), vr(t + 1)), 'v_cmp_ne_u32 vcc, 0, %s' % vr(t)]
        g.poll_check(P, g.stats_loads(), cmpc)
        g.ts(P, 'stats_ok')
        P('v_add_f32 %s, %s, %s' % (vr(st), vr(st), vr(st + 4))); P('v_add_f32 %s, %s, %s' % (vr(st + 2), vr(st + 2), vr(st + 6)))
        g.xreduce(P, st, t); g.xreduce(P, st + 2, t)
        P('v_mul_f32 %s, %s, %s' % (vr(st), fh(1 / 768), vr(st))); P('v_mul_f32 %s, %s, %s' % (vr(st + 2), fh(1 / 768), vr(st + 2)))
        P('v_fma_f32 %s, -%s, %s, %s' % (vr(st + 2), vr(st), vr(st), vr(st + 2))); P('v_max_f32 %s, 0, %s' % (vr(st + 2), vr(st + 2))); P('v_add_f32 %s, %s, %s' % (vr(st + 2), fh(1e-5), vr(st + 2)))
        P('v_rsq_f32 %s, %s' % (vr(st + 2), vr(st + 2))); P('v_mul_f32 %s, %s, %s' % (vr(st + 3), vr(st), vr(st + 2)))
        pk = g.A(12, 4)
        for a in range(3):
            for p in range(4):
                X = vr(zz + 8 * a + 2 * p, 2)
                P('v_pk_fma_f32 %s, %s, %s, %s op_sel:[0,0,1] op_sel_hi:[1,0,1] neg_lo:[0,0,1] neg_hi:[0,0,1]' % (X, X, vr(st + 2, 2), vr(st + 2, 2)))
            for p in range(4): P('v_cvt_pk_bf16_f32 %s, %s, %s' % (vr(pk + 4 * a + p), vr(zz + 8 * a + 2 * p), vr(zz + 8 * a + 2 * p + 1)))
            P.group([I('s_lshl_b32 %s, %s, 10' % (sr(sT0), sr(sRB))), I('s_add_u32 %s, %s, %s' % (sr(sT0), sr(sT0), sr(sZ))), I('s_add_u32 %s, %s, %d' % (sr(sT0), sr(sT0), a * 4 * 32768)),
                     I('buffer_store_dwordx4 %s, %s, %s, %s offen sc1' % (vr(pk + 4 * a, 4), vr(g.vZS), srd('ws'), sr(sT0)), gives=['z2st'])])
        g.F(t, 2); g.F(pk, 12)
        return P
    def colflag_off(g, base):
        return ['s_lshl_b32 %s, %s, 2' % (sr(sT3), sr(sCB)), 's_add_u32 %s, %s, %s' % (sr(sT3), sr(sT3), sr(sW)), 's_lshl_b32 %s, %s, 5' % (sr(sT3), sr(sT3)),
                's_add_u32 %s, %s, %s' % (sr(sT3), sr(sT3), sr(sRB)), 's_lshl_b32 %s, %s, 2' % (sr(sT3), sr(sT3)), 's_add_u32 %s, %s, %d' % (sr(sT3), sr(sT3), base)]

    def gate(g, z1):
        P = Prog(); a = g.A(16, 4); acc = g.A(4, 4); ad = g.A()
        P('v_lshlrev_b32 %s, 4, %s' % (vr(ad), vr(g.vG))); P('v_add_u32 %s, %d, %s' % (vr(ad), GW, vr(ad)))
        rd = lambda ks: 'ds_read_b128 %s, %s offset:%d' % (vr(a + 4 * (ks % 4), 4), vr(ad), 64 * ks)
        for ks in range(3): P(rd(ks), needs=['bar19'])
        for ks in range(20):
            if ks + 3 < 20: P(rd(ks + 3), gives=['gwrd'])
            P('v_mfma_f32_16x16x32_bf16 %s, %s, %s, %s' % (vr(acc, 4), vr(a + 4 * (ks % 4), 4), vr(g.xf + 4 * ks, 4), vr(acc, 4) if ks else '0'))
        g.vGT = g.A(2)
        P('v_mul_f32 %s, %s, %s' % (vr(g.vGT), fh(-math.log2(math.e)), vr(acc))); P('v_exp_f32 %s, %s' % (vr(g.vGT), vr(g.vGT))); P('v_add_f32 %s, 1.0, %s' % (vr(g.vGT), vr(g.vGT)))
        P('v_rcp_f32 %s, %s' % (vr(g.vGT), vr(g.vGT))); P('v_sub_f32 %s, 1.0, %s' % (vr(g.vGT + 1), vr(g.vGT)))
        for p in range(12): P('v_pk_mul_f32 %s, %s, %s op_sel:[0,1] op_sel_hi:[1,1]' % (vr(z1 + 2 * p, 2), vr(z1 + 2 * p, 2), vr(g.vGT, 2)))
        P('v_lshlrev_b32 %s, 16, %s' % (vr(g.vB), vr(g.vB)))
        g.F(a, 16); g.F(acc, 4); g.F(ad)
        return P

    def wd_loads(g, pl):
        P = Prog()
        for v in range(4):
            P.group([I('s_lshl_b32 %s, %s, 12' % (sr(sBG), sr(sW))), I('s_add_u32 m0, %s, %d' % (sr(sBG), WD + WDP * pl + 1024 * v)), I('s_mul_i32 %s, %s, %d' % (sr(sBG), sr(sCB), 40 * 1280)),
                     I('buffer_load_dwordx4 %s, %s, %s offen lds' % (vr(g.vDD[v]), srd('him' if pl else 'hre'), sr(sBG)), ['bar%d' % (17 + pl)], ['wd'])])
        return P

    def cgemm(g):
        P = Prog(); t0 = g.A(); t1 = g.A()
        cr = [[g.A() for _ in range(3)] for _ in range(2)]
        P('v_mul_u32_u24 %s, 384, %s' % (vr(t0), vr(g.vI))); P('v_add_u32 %s, %s, %s' % (vr(t0), vr(t0), vr(g.vSWZ))); P('v_add_u32 %s, %d, %s' % (vr(cr[0][0]), WD, vr(t0)))
        P('v_xor_b32 %s, 64, %s' % (vr(cr[1][0]), vr(cr[0][0])))
        P('v_and_b32 %s, 1, v0' % vr(t1)); P('v_lshlrev_b32 %s, 14, %s' % (vr(t1), vr(t1))); P('v_xor_b32 %s, %d, %s' % (vr(t0), WDP, vr(t1)))
        for par in range(2):
            P('v_add_u32 %s, %s, %s' % (vr(cr[par][1]), vr(cr[par][0]), vr(t1))); P('v_add_u32 %s, %s, %s' % (vr(cr[par][2]), vr(cr[par][0]), vr(t0)))
        sg = g.A(4)
        P('v_lshlrev_b32 %s, 30, v0' % vr(t0)); P('v_and_b32 %s, 0x80000000, %s' % (vr(t0), vr(t0))); P('v_or_b32 %s, 1.0, %s' % (vr(sg), vr(t0)))
        P('v_lshlrev_b32 %s, 31, v0' % vr(t1)); P('v_or_b32 %s, 1.0, %s' % (vr(sg + 1), vr(t1))); P('v_xor_b32 %s, %s, %s' % (vr(sg + 2), vr(sg), vr(t1)))
        cw = g.A()
        P('v_mul_u32_u24 %s, 160, %s' % (vr(t0), vr(g.vI))); P('v_lshl_add_u32 %s, %s, 3, %s' % (vr(t0), vr(g.vG), vr(t0)))
        P.group([I('s_lshl_b32 %s, %s, 5' % (sr(sT0), sr(sW))), I('s_add_u32 %s, %s, %d' % (sr(sT0), sr(sT0), CP)), I('v_add_u32 %s, %s, %s' % (vr(cw), sr(sT0), vr(t0)))])
        g.F(t0); g.F(t1)
        P('s_barrier', needs=['wd', 'rd19'], gives=['barC'])
        acc = g.A(48, 4); bf = [g.A(12, 4), g.A(12, 4)]; pk = g.A(6)
        for o in range(2):
            steps = [(ks0, dp) for ks0 in range(5) for dp in range(2)]
            def rd(n):
                ks0, dp = steps[n]; L = []
                for b in range(3):
                    ad = cr[ks0 & 1][0] if dp == 0 else cr[ks0 & 1][1 + o]
                    imm = 384 * 16 * b + 128 * (ks0 >> 1) + (WDP * o if dp == 0 else 0)
                    L.append([I('ds_read_b128 %s, %s offset:%d' % (vr(bf[n & 1] + 4 * b, 4), vr(ad), imm), ['barC'], ['wdrd'])])
                return L
            P.extend(rd(0))
            for n, (ks0, dp) in enumerate(steps):
                nxt = rd(n + 1) if n + 1 < len(steps) else []
                k = 0
                for d1 in (dp, dp + 2):
                    for b in range(3):
                        ac = vr(acc + 12 * d1 + 4 * b, 4)
                        P('v_mfma_f32_16x16x32_bf16 %s, %s, %s, %s' % (ac, vr(g.xf + 4 * (5 * d1 + ks0), 4), vr(bf[n & 1] + 4 * b, 4), ac if ks0 else '0'))
                        if k < len(nxt) and d1 == dp: P.group(nxt[k]); k += 1
            sgn = [sg, sg + 1, sg + 2] if o == 0 else [sg + 2, sg + 1, sg]
            for d1 in range(1, 4):
                for k in range(12): P('v_fmac_f32 %s, %s, %s' % (vr(acc + k), vr(sgn[d1 - 1]), vr(acc + 12 * d1 + k)))
            for k in range(6): P('v_cvt_pk_bf16_f32 %s, %s, %s' % (vr(pk + k), vr(acc + 2 * k), vr(acc + 2 * k + 1)))
            for b in range(3): P('ds_write_b64 %s, %s offset:%d' % (vr(cw), vr(pk + 2 * b, 2), CPP * o + 2560 * b), gives=['cw'])
            if o == 1:
                pk2 = g.A(6)
                for k in range(6): P('v_xor_b32 %s, 0x80008000, %s' % (vr(pk2 + k), vr(pk + k)))
                for b in range(3): P('ds_write_b64 %s, %s offset:%d' % (vr(cw), vr(pk2 + 2 * b, 2), CPP * 2 + 2560 * b), gives=['cw'])
                g.F(pk2, 6)
        g.F(acc, 48); g.F(bf[0], 12); g.F(bf[1], 12); g.F(pk, 6); g.F(cw); g.F(sg, 4)
        for par in range(2):
            for k in range(3): g.F(cr[par][k])
        return P

    def ft_loads(g):
        P = Prog(); g.vFr = g.A(8, 4); g.vFi = g.A(8, 4); g.vTr = g.A(4, 4); g.vTi = g.A(4, 4)
        for ks in range(2):
            P('buffer_load_dwordx4 %s, %s, %s, %s offen offset:%d' % (vr(g.vFr + 4 * ks, 4), vr(g.vFT), srd('sre'), sr(sF), 64 * ks))
            P('buffer_load_dwordx4 %s, %s, %s, %s offen offset:%d' % (vr(g.vFi + 4 * ks, 4), vr(g.vFT), srd('sim'), sr(sF), 64 * ks))
        P('buffer_load_dwordx4 %s, %s, %s, %s offen' % (vr(g.vTr, 4), vr(g.vFT), srd('sre'), sr(sTT)))
        P('buffer_load_dwordx4 %s, %s, %s, %s offen' % (vr(g.vTi, 4), vr(g.vFT), srd('sim'), sr(sTT)))
        return P

    def step1(g):
        P = Prog(); t0 = g.A(); t1 = g.A(); t2 = g.A()
        nFi = g.A(8, 4)
        for k in range(8): P('v_xor_b32 %s, 0x80008000, %s' % (vr(nFi + k), vr(g.vFi + k)))
        a0 = g.A(); a2 = [g.A(), g.A()]; a2i = [g.A(), g.A()]; a4 = g.A()
        P('v_lshrrev_b32 %s, 2, %s' % (vr(t0), vr(g.vI))); P('v_and_b32 %s, 3, v0' % vr(t1)); P('v_lshl_add_u32 %s, %s, 3, %s' % (vr(t0), vr(t0), vr(t1)))
        P('v_lshlrev_b32 %s, 4, %s' % (vr(t2), vr(g.vG))); P('v_add_u32 %s, %d, %s' % (vr(t2), CP, vr(t2)))
        P('v_mul_u32_u24 %s, 160, %s' % (vr(t1), vr(t0))); P('v_add_u32 %s, %s, %s' % (vr(a0), vr(t1), vr(t2)))
        P('v_cmp_gt_u32 vcc, 4, %s' % vr(g.vI))
        t3 = g.A(); t4 = g.A()
        for fb in range(2):
            P('v_add_u32 %s, %d, %s' % (vr(t3), 32 + 4 * fb, vr(t0))); P('v_sub_u32 %s, %d, %s' % (vr(t4), 48 - 4 * fb, vr(t0))); P('v_cndmask_b32 %s, %s, %s, vcc' % (vr(t3), vr(t4), vr(t3)))
            P('v_mul_u32_u24 %s, 160, %s' % (vr(t3), vr(t3))); P('v_add_u32 %s, %s, %s' % (vr(a2[fb]), vr(t3), vr(t2)))
            P('v_add_u32 %s, %d, %s' % (vr(t3), CPP, vr(a2[fb]))); P('v_add_u32 %s, %d, %s' % (vr(t4), 2 * CPP, vr(a2[fb]))); P('v_cndmask_b32 %s, %s, %s, vcc' % (vr(a2i[fb]), vr(t4), vr(t3)))
        P('v_sub_u32 %s, 16, %s' % (vr(t3), vr(g.vI))); P('v_mul_u32_u24 %s, 160, %s' % (vr(t3), vr(t3))); P('v_add_u32 %s, %s, %s' % (vr(a4), vr(t3), vr(t2)))
        u = [g.A(), g.A(), g.A()]
        P.group([I(x) for x in [
            's_and_b32 %s, %s, 1' % (sr(sT0), sr(sW)), 's_lshl_b32 %s, %s, 7' % (sr(sT0), sr(sT0)), 's_mul_i32 %s, %s, 20480' % (sr(sT0), sr(sT0)),
            's_lshr_b32 %s, %s, 1' % (sr(sT1), sr(sW)), 's_mul_i32 %s, %s, 10240' % (sr(sT1), sr(sT1)), 's_add_u32 %s, %s, %s' % (sr(sT0), sr(sT0), sr(sT1)),
            's_and_b32 %s, %s, 4' % (sr(sT1), sr(sRB)), 's_lshl_b32 %s, %s, 2' % (sr(sT1), sr(sT1)), 's_lshr_b32 %s, %s, 3' % (sr(sT2), sr(sRB)), 's_lshl_b32 %s, %s, 2' % (sr(sT2), sr(sT2)),
            's_add_u32 %s, %s, %s' % (sr(sT1), sr(sT1), sr(sT2)), 's_and_b32 %s, %s, 3' % (sr(sT2), sr(sRB)), 's_add_u32 %s, %s, %s' % (sr(sT1), sr(sT1), sr(sT2)),
            's_mul_i32 %s, %s, 160' % (sr(sT1), sr(sT1)), 's_add_u32 %s, %s, %s' % (sr(sT0), sr(sT0), sr(sT1)), 's_add_u32 %s, %s, %d' % (sr(sT0), sr(sT0), U),
            's_lshr_b32 %s, %s, 1' % (sr(sT1), sr(sCB)), 's_mul_i32 %s, %s, 20480' % (sr(sT1), sr(sT1)), 's_and_b32 %s, %s, 1' % (sr(sT2), sr(sCB)), 's_mul_i32 %s, %s, 80' % (sr(sT2), sr(sT2)),
            's_add_u32 %s, %s, %s' % (sr(sT1), sr(sT1), sr(sT2)),
            's_add_u32 %s, %s, %s' % (sr(sUD), sr(sT0), sr(sT1)), 's_sub_u32 %s, %s, %s' % (sr(sUM), sr(sT0), sr(sT1)), 's_add_u32 %s, %s, %d' % (sr(sUM), sr(sUM), 7 * 20480)]])
        P('v_mov_b32 %s, 163840' % vr(t3)); P('v_mul_u32_u24 %s, %s, %s' % (vr(t3), vr(t3), vr(g.vI)))
        P('v_lshl_add_u32 %s, %s, 4, %s' % (vr(t4), vr(g.vG), vr(t3))); P('v_add_u32 %s, %s, %s' % (vr(u[0]), sr(sUD), vr(t4)))
        P('v_add_u32 %s, %s, %s' % (vr(t4), sr(sUM), vr(t4))); P('v_cmp_eq_u32 vcc, 0, %s' % vr(g.vG)); P('v_cndmask_b32 %s, %s, %s, vcc' % (vr(u[1]), vr(t4), vr(u[0])))
        P('v_lshl_add_u32 %s, %s, 3, %s' % (vr(t4), vr(g.vG), vr(t3))); P('v_add_u32 %s, %s, %s' % (vr(u[2]), sr(sUM), vr(t4)))
        for x in (t0, t1, t2, t3, t4): g.F(x)
        P('s_barrier', needs=['cw'], gives=['barD'])
        D = g.A(40, 4); af = [g.A(16, 4), g.A(16, 4)]; pk = g.A(20, 4)
        def rd(bb):
            L = []
            for ks in range(2):
                if bb < 2: ar_, ai_, ir, ii = a0, a0, 640 * bb, 640 * bb + CPP
                elif bb < 4: ar_, ai_, ir, ii = a2[bb - 2], a2i[bb - 2], 0, 0
                else: ar_, ai_, ir, ii = a4, a4, 0, 2 * CPP
                L.append([I('ds_read_b128 %s, %s offset:%d' % (vr(af[bb & 1] + 4 * ks, 4), vr(ar_), ir + 64 * ks), ['barD'], ['cprd'])])
                L.append([I('ds_read_b128 %s, %s offset:%d' % (vr(af[bb & 1] + 8 + 4 * ks, 4), vr(ai_), ii + 64 * ks), ['barD'], ['cprd'])])
            return L
        P.extend(rd(0))
        for bb in range(5):
            nxt = rd(bb + 1) if bb < 4 else []
            dr = vr(D + 4 * bb, 4); di = vr(D + 20 + 4 * bb, 4); k = 0
            for ks in range(2):
                crf = vr(af[bb & 1] + 4 * ks, 4); cif = vr(af[bb & 1] + 8 + 4 * ks, 4)
                for (d, a_, b_, first) in ((dr, crf, g.vFr, ks == 0), (di, crf, g.vFi, ks == 0), (dr, cif, nFi, False), (di, cif, g.vFr, False)):
                    P('v_mfma_f32_16x16x32_bf16 %s, %s, %s, %s' % (d, a_, vr(b_ + 4 * ks, 4), '0' if first else d))
                    if k < len(nxt): P.group(nxt[k]); k += 1
        for ri in range(2):
            for bb in range(5):
                dst = pk + 8 * ri + 2 * bb if bb < 4 else pk + 16 + 2 * ri
                for h in range(2): P('v_cvt_pk_bf16_f32 %s, %s, %s' % (vr(dst + h), vr(D + 20 * ri + 4 * bb + 2 * h), vr(D + 20 * ri + 4 * bb + 2 * h + 1)))
            so = sr(sC5120) if ri else '0'
            P('buffer_store_dwordx4 %s, %s, %s, %s offen sc1' % (vr(pk + 8 * ri, 4), vr(u[0]), srd('ws'), so), gives=['ust'])
            P('buffer_store_dwordx4 %s, %s, %s, %s offen offset:64 sc1' % (vr(pk + 8 * ri + 4, 4), vr(u[1]), srd('ws'), so), gives=['ust'])
            P('buffer_store_dwordx2 %s, %s, %s, %s offen offset:128 sc1' % (vr(pk + 16 + 2 * ri, 2), vr(u[2]), srd('ws'), so), gives=['ust'])
        g.F(D, 40); g.F(af[0], 16); g.F(af[1], 16); g.F(pk, 20); g.F(nFi, 8); g.F(g.vFr, 8); g.F(g.vFi, 8)
        for x in [a0, a4] + a2 + a2i + u: g.F(x)
        return P

    def wsp_stream(g):
        P = Prog()
        def D(n):
            tb, pp = n >> 2, n & 3
            for u in range(8):
                g.dma(P, g.vSD[u & 3], 'wsp', sr(sS + 2 * tb + (u >> 2)), 8192 * (n & 1) + 1024 * u, imm=256 * pp, needs=['xread'] if n < 2 else ['spr%d' % (n - 2)], gives=['spd%d' % n])
        def R(n):
            tb, pp = n >> 2, n & 3
            for j in range(8):
                p = 2 * pp + (j >> 2); a8 = j & 3
                P('ds_read_b128 %s, %s offset:%d' % (ar(((a8 * 8 + p) * 2 + tb) * 4, 4), vr(g.vSR[j]), 8192 * (n & 1)), needs=['spd%d' % n], gives=['spr%d' % n])
        D(0); D(1)
        for n in range(8):
            R(n)
            if n + 2 < 8: D(n + 2)
        return P

    def z2_dma(g, n):
        P = Prog(); a, gi = divmod(n, 4)
        for i in range(8):
            pre = 's_add_u32 %s, %s, %d' % (sr(sBG), sr(sZ), a * 4 * 32768 + 8192 * gi + 4096 * (i >> 2))
            g.dma(P, g.vL16, 'ws', sr(sBG), 8704 * (n & 1) + 1088 * i, imm=1024 * (i & 3), pre=pre, flags=' sc1',
                  needs=['spr6', 'spr7', 'zok'] if n < 2 else ['zr%d' % (n - 2)], gives=['zd%d' % n])
        return P
    def setup4(g):
        P = Prog(); t0 = g.A(); t1 = g.A()
        g.vZR = g.A()
        P('v_bfe_u32 %s, v0, 2, 2' % vr(t0)); P('v_mul_u32_u24 %s, 1088, %s' % (vr(t0), vr(t0))); P('v_lshl_add_u32 %s, %s, 5, %s' % (vr(t0), vr(g.vG), vr(t0)))
        P('v_and_b32 %s, 3, v0' % vr(t1)); P('v_lshl_add_u32 %s, %s, 3, %s' % (vr(t0), vr(t1), vr(t0))); P('v_add_u32 %s, %s, %s' % (vr(g.vZR), sr(sP), vr(t0)))
        g.vRW = g.A(); g.vRR = g.A()
        P('v_and_b32 %s, 1, %s' % (vr(t0), vr(g.vG))); P('v_lshlrev_b32 %s, 11, %s' % (vr(t0), vr(t0))); P('v_lshrrev_b32 %s, 5, v0' % vr(t1)); P('v_lshl_add_u32 %s, %s, 10, %s' % (vr(t0), vr(t1), vr(t0)))
        P('v_lshl_add_u32 %s, %s, 4, %s' % (vr(t0), vr(g.vI), vr(t0)))
        P.group([I('s_lshl_b32 %s, %s, 13' % (sr(sT0), sr(sW))), I('s_add_u32 %s, %s, %d' % (sr(sT0), sr(sT0), RED)), I('v_add_u32 %s, %s, %s' % (vr(g.vRW), sr(sT0), vr(t0)))])
        P.group([I('s_lshl_b32 %s, %s, 11' % (sr(sT0), sr(sW))), I('s_add_u32 %s, %s, %d' % (sr(sT0), sr(sT0), RED)), I('v_add_u32 %s, %s, %s' % (vr(g.vRR), sr(sT0), vr(g.vL16)))])
        g.vOR = [g.A(), g.A(), g.A()]
        P('v_lshrrev_b32 %s, 2, v0' % vr(t0)); P('v_mul_u32_u24 %s, 160, %s' % (vr(t0), vr(t0))); P('v_and_b32 %s, 3, v0' % vr(t1)); P('v_lshl_add_u32 %s, %s, 3, %s' % (vr(g.vOR[1]), vr(t1), vr(t0)))
        P('v_add_u32 %s, %d, %s' % (vr(g.vOR[0]), WO0, vr(g.vOR[1]))); P('v_add_u32 %s, 40960, %s' % (vr(g.vOR[2]), vr(g.vOR[1])))
        g.vOD = [g.A() for _ in range(5)]; t2 = g.A()
        for v in range(5):
            P('v_add_u32 %s, %d, v0' % (vr(t0), 64 * v)); P('v_mul_u32_u24 %s, 6554, %s' % (vr(t1), vr(t0))); P('v_lshrrev_b32 %s, 16, %s' % (vr(t1), vr(t1)))
            P('v_mul_u32_u24 %s, 10, %s' % (vr(t2), vr(t1))); P('v_sub_u32 %s, %s, %s' % (vr(t0), vr(t0), vr(t2)))
            P('v_mul_u32_u24 %s, 1280, %s' % (vr(t1), vr(t1))); P('v_lshl_add_u32 %s, %s, 4, %s' % (vr(g.vOD[v]), vr(t0), vr(t1)))
        g.vL4 = g.A(); P('v_and_b32 %s, 31, v0' % vr(t0)); P('v_lshlrev_b32 %s, 2, %s' % (vr(g.vL4), vr(t0)))
        g.vH4 = g.A(); P('v_and_b32 %s, 7, v0' % vr(t0)); P('v_lshlrev_b32 %s, 2, %s' % (vr(g.vH4), vr(t0)))
        g.vOS = g.A(); P('v_mul_u32_u24 %s, 40960, %s' % (vr(t0), vr(g.vI))); P('v_lshl_add_u32 %s, %s, 3, %s' % (vr(g.vOS), vr(g.vG), vr(t0)))
        g.vUF = g.A()
        P('v_lshrrev_b32 %s, 1, %s' % (vr(t0), vr(g.vG))); P('v_lshlrev_b32 %s, 9, %s' % (vr(t0), vr(t0))); P('v_and_b32 %s, 1, %s' % (vr(t1), vr(g.vG))); P('v_lshl_add_u32 %s, %s, 8, %s' % (vr(t0), vr(t1), vr(t0)))
        P('v_lshl_add_u32 %s, %s, 3, %s' % (vr(g.vUF), vr(g.vI), vr(t0)))
        g.F(t0); g.F(t1); g.F(t2)
        return P
    def granule(g, n, acc, zf, mid=()):
        P = Prog(); a, gi = divmod(n, 4)
        for p in range(8):
            for kk in range(2):
                P('ds_read_b64_tr_b16 %s, %s offset:%d' % (vr(zf + 4 * p + 2 * kk, 2), vr(g.vZR), 8704 * (n & 1) + 4352 * kk + 128 * p), needs=['zd%d' % n], gives=['zr%d' % n])
        ld = list(g.z2_dma(n + 2).groups) if n + 2 < 12 else []
        ld += list(mid)
        k = 0
        for p in range(8):
            for tb in range(2):
                ac = vr(acc + 16 * tb, 16)
                P('v_mfma_f32_32x32x16_bf16 %s, %s, %s, %s' % (ac, vr(zf + 4 * p, 4), ar(((gi * 8 + p) * 2 + tb) * 4, 4), '0' if (gi == 0 and p == 0) else ac))
                m = 2 * p + tb
                if m >= 5:
                    nb = -(-(len(ld) - k) // (16 - m)); P.extend(ld[k:k + nb]); k += nb
        return P
    def reduce_epi(g, a, acc, z1, bar_needs=()):
        P = Prog()
        for tb in range(2):
            for i in range(4):
                P('ds_write_b128 %s, %s offset:%d' % (vr(g.vRW), vr(acc + 16 * tb + 4 * i, 4), 4096 * tb + 256 * i), needs=['barR%d' % a], gives=['rw%d' % a])
        P('s_barrier', needs=['rw%d' % a] + list(bar_needs), gives=['barW%d' % a])
        t = g.A(32, 4)
        for src in range(4):
            for hh in range(2):
                P('ds_read_b128 %s, %s offset:%d' % (vr(t + 8 * src + 4 * hh, 4), vr(g.vRR), 8192 * src + 1024 * hh), needs=['barW%d' % a], gives=['rr%d' % a])
        for p in range(4):
            P('v_pk_add_f32 %s, %s, %s' % (vr(t + 2 * p, 2), vr(t + 2 * p, 2), vr(t + 8 + 2 * p, 2)))
        for p in range(4):
            P('v_pk_add_f32 %s, %s, %s' % (vr(t + 16 + 2 * p, 2), vr(t + 16 + 2 * p, 2), vr(t + 24 + 2 * p, 2)))
        for p in range(4):
            P('v_pk_add_f32 %s, %s, %s op_sel_hi:[1,0]' % (vr(t + 2 * p, 2), vr(t + 2 * p, 2), vr(g.vB2, 2)))
        for p in range(4):
            P('v_pk_add_f32 %s, %s, %s' % (vr(t + 2 * p, 2), vr(t + 2 * p, 2), vr(t + 16 + 2 * p, 2)))
        for p in range(4):
            P('v_pk_mul_f32 %s, %s, %s' % (vr(t + 2 * p, 2), vr(t + 2 * p, 2), vr(z1 + 8 * a + 2 * p, 2)))
        for p in range(4):
            P('v_cvt_pk_bf16_f32 %s, %s, %s' % (vr(t + 8 + p), vr(t + 2 * p), vr(t + 2 * p + 1)))
        P.group([I('s_add_u32 %s, %s, %d' % (sr(sT0), sr(sCB), 8 * a)), I('s_lshl_b32 %s, %s, 10' % (sr(sT0), sr(sT0))), I('s_add_u32 %s, %s, %s' % (sr(sT0), sr(sT0), sr(sHB))),
                 I('buffer_store_dwordx4 %s, %s, %s, %s offen sc1' % (vr(t + 8, 4), vr(g.vL16), srd('ws'), sr(sT0)), gives=['hst%d' % a])])
        g.F(t, 32)
        return P
    def hflag_base(g, a, dst):
        return ['s_lshl_b32 %s, %s, 2' % (sr(dst), sr(sRB)), 's_add_u32 %s, %s, %s' % (sr(dst), sr(dst), sr(sW)), 's_lshl_b32 %s, %s, 7' % (sr(dst), sr(dst)), 's_add_u32 %s, %s, %d' % (sr(dst), sr(dst), HF + a * 16384)]
    def hflag(g, P, a):
        g.flag_store(P, g.hflag_base(a, sT3) + ['s_lshl_b32 %s, %s, 2' % (sr(sT2), sr(sCB)), 's_add_u32 %s, %s, %s' % (sr(sT3), sr(sT3), sr(sT2))], ['hst%d' % a])
    def wout_dma(g, a, needs):
        P = Prog()
        base = WO0 if a == 0 else 40960 * (a - 1)
        for j in range(2):
            for v in range(5):
                grp = []
                if v == 0:
                    grp += [I('s_mul_i32 %s, %s, %d' % (sr(sBG), sr(sW), 96 * 1280)), I('s_mul_i32 %s, %s, 160' % (sr(sUD), sr(sCB))), I('s_add_u32 %s, %s, %s' % (sr(sUD), sr(sUD), sr(sBG))),
                            I('s_add_u32 %s, %s, %d' % (sr(sUD), sr(sUD), (96 * 4 * j + 32 * a) * 1280)), I('s_mul_i32 %s, %s, 5120' % (sr(sUM), sr(sW)))]
                grp += [I('s_add_u32 m0, %s, %d' % (sr(sUM), base + 5120 * 4 * j + 1024 * v)),
                        I('buffer_load_dwordx4 %s, %s, %s offen lds' % (vr(g.vOD[v]), srd('wout'), sr(sUD)), needs, ['wo%d' % a])]
                P.group(grp)
        return P
    def u_dma(g, needs):
        P = Prog()
        for v in range(5):
            grp = []
            if v == 0:
                grp += [I('s_lshl_b32 %s, %s, 3' % (sr(sUD), sr(sRB))), I('s_add_u32 %s, %s, %s' % (sr(sUD), sr(sUD), sr(sCB))), I('s_mul_i32 %s, %s, 20480' % (sr(sUD), sr(sUD))),
                        I('s_mul_i32 %s, %s, 5120' % (sr(sUM), sr(sW))), I('s_add_u32 %s, %s, %s' % (sr(sUD), sr(sUD), sr(sUM))), I('s_add_u32 %s, %s, %d' % (sr(sUD), sr(sUD), U))]
            if v == 4: grp += [I('s_add_u32 %s, %s, 4096' % (sr(sUD), sr(sUD)))]
            grp += [I('s_add_u32 m0, %s, %d' % (sr(sUM), UL + (4096 if v == 4 else 0))),
                    I('buffer_load_dwordx4 %s, %s, %s offen offset:%d sc1 lds' % (vr(g.vL16), srd('ws'), sr(sUD), 1024 * (v & 3)), needs, ['ud'])]
            P.group(grp)
        return P
    def tr_ksteps(g, P, steps, acc, first_zero=False):
        af = [g.A(20, 4), g.A(20, 4)]
        def rd(n):
            bv, imm, _, needs, gives = steps[n]
            return [[I('ds_read_b64_tr_b16 %s, %s offset:%d' % (vr(af[n & 1] + 4 * b + 2 * kk, 2), vr(bv), imm + 2560 * kk + 32 * b), needs, gives)] for b in range(5) for kk in range(2)]
        P.extend(rd(0))
        for n in range(len(steps)):
            nxt = rd(n + 1) if n + 1 < len(steps) else []
            for b in range(5):
                ac = vr(acc + 4 * b, 4)
                P('v_mfma_f32_16x16x32_bf16 %s, %s, %s, %s' % (ac, vr(af[n & 1] + 4 * b, 4), steps[n][2], '0' if (first_zero and n == 0) else ac))
                P.extend(nxt[2 * b:2 * b + 2])
        g.F(af[0], 20); g.F(af[1], 20)
    def ypart(g, acc3):
        P = Prog(); tq = g.A(16, 4); t = g.A()
        P('v_and_b32 %s, 1, v0' % vr(t)); P('v_cmp_eq_u32 vcc, 0, %s' % vr(t))
        for k in range(4): P('v_xor_b32 %s, 0x80008000, %s' % (vr(g.vTi + k), vr(g.vTi + k)))
        for k in range(4):
            P('v_cndmask_b32 %s, 0, %s, vcc' % (vr(tq + k), vr(g.vTr + k))); P('v_cndmask_b32 %s, 0, %s, vcc' % (vr(tq + 4 + k), vr(g.vTi + k)))
            P('v_cndmask_b32 %s, %s, %s, vcc' % (vr(tq + 8 + k), vr(g.vTr + k), vr(g.vZERO))); P('v_cndmask_b32 %s, %s, %s, vcc' % (vr(tq + 12 + k), vr(g.vTi + k), vr(g.vZERO)))
        steps = [(g.vOR[0], UL - WO0 + 5120 * n, vr(tq + 4 * n, 4), ['barU'], ['urd']) for n in range(4)]
        g.tr_ksteps(P, steps, acc3, first_zero=True)
        for p in range(10): P('v_pk_mul_f32 %s, %s, %s op_sel_hi:[1,0]' % (vr(acc3 + 2 * p, 2), vr(acc3 + 2 * p, 2), vr(g.vGT, 2)))
        g.F(tq, 16); g.F(t); g.F(g.vTr, 4); g.F(g.vTi, 4)
        return P
    def h_loads(g, a, hf, needs):
        P = Prog()
        for c in range(8):
            grp = []
            if c % 4 == 0: grp.append(I('s_add_u32 %s, %s, %d' % (sr(sBG), sr(sHB), 1024 * (8 * a + c))))
            grp.append(I('buffer_load_dwordx4 %s, %s, %s, %s offen offset:%d sc1' % (vr(hf + 4 * c, 4), vr(g.vL16), srd('ws'), sr(sBG), 1024 * (c % 4)), needs))
            P.group(grp)
        return P
    def simple_poll(g, P_issue, P_check, vaddr, offcode, sreg, width, gives):
        f = g.A(width)
        ld = 'buffer_load_dword%s %s, %s, %s, %s offen sc1' % ('x2' if width == 2 else '', vr(f, width), vr(vaddr), srd('ws'), sr(sreg))
        P_issue.group([I(x) for x in offcode] + [I(ld)])
        if width == 1: cmpc = ['v_cmp_ne_u32 vcc, %s, %s' % (sr(sTAG), vr(f))]
        else: cmpc = ['v_xor_b32 %s, %s, %s' % (vr(f), sr(sTAG), vr(f)), 'v_xor_b32 %s, %s, %s' % (vr(f + 1), sr(sTAG), vr(f + 1)), 'v_or_b32 %s, %s, %s' % (vr(f), vr(f), vr(f + 1)), 'v_cmp_ne_u32 vcc, 0, %s' % vr(f)]
        g.poll_check(P_check, [ld], cmpc, gives)
        return f

    def build(g):
        g.ts_labels = []
        P = g.prologue()
        for ch in range(4): P.extend(g.chunk_loads(ch))
        P.extend(g.setup2())
        P('s_waitcnt lgkmcnt(0)')
        g.xf = g.A(80, 4); zz = g.A(24, 4); z1 = g.A(24, 4)
        g.hold(); s3 = g.setup3(); h3 = g.unhold()
        P.extend(merge(g.gemm1(0, zz, {}), s3, start=100, period=8)); g.release(h3)
        g.ts(P, 'zz_done')
        wsp = g.wsp_stream().groups
        C = Prog(); g.gelu(C, zz, 24); C.extend(g.stats_publish(zz))
        P.extend(merge(C, wsp[:16])); wsp = wsp[16:]
        g.ts(P, 'stats_pub')
        g.vST = g.A(8, 4)
        sl = Prog(); [sl(x) for x in g.stats_loads()]
        ex = {17: g.wd_loads(0), 18: g.wd_loads(1), 19: sl}
        P.extend(g.gemm1(10, z1, ex, first_bar_needs=['gw']))
        for x in g.vXD + g.vWD + g.vTA + g.vXR + g.vDD: g.F(x)
        P.extend(g.normalize(zz))
        g.F(zz, 24); g.F(g.vST, 8)
        E = Prog()
        E.extend(g.ft_loads())
        g.gelu(E, z1, 24)
        g.flag_store(E, g.colflag_off(ZF), ['z2st'])
        g.ts(E, 'zflag')
        E.extend(g.gate(z1))
        E.extend(g.cgemm())
        g.F(g.xf, 80)
        E.extend(g.step1())
        E.extend(g.setup4())
        P.extend(merge(E, wsp))
        for x in g.vSD + g.vSR: g.F(x)
        g.vB2 = g.A(2); P('v_mov_b32 %s, %s' % (vr(g.vB2), vr(g.vB)))
        off = ['s_lshl_b32 %s, %s, 2' % (sr(sOO), sr(sCB)), 's_add_u32 %s, %s, %s' % (sr(sOO), sr(sOO), sr(sW)), 's_lshl_b32 %s, %s, 7' % (sr(sOO), sr(sOO)), 's_add_u32 %s, %s, %d' % (sr(sOO), sr(sOO), ZF)]
        f = g.simple_poll(P, P, g.vL4, off, sOO, 1, ['zok']); g.F(f)
        g.ts(P, 'zok')
        P.extend(g.z2_dma(0)); P.extend(g.z2_dma(1))
        g.flag_store(P, g.colflag_off(UF), ['ust'])
        acc = g.A(32, 4); zf = g.A(32, 4); acc3 = g.A(20, 4)
        for a in range(3):
            for gi in range(4):
                mid = Prog()
                if a == 1 and gi == 0: g.hflag(mid, 0)
                if a == 2 and gi == 0: g.hflag(mid, 1)
                if a == 0 and gi == 2:
                    off = ['s_sub_u32 %s, 7, %s' % (sr(sOO), sr(sCB)), 's_min_u32 %s, %s, %s' % (sr(sOO), sr(sOO), sr(sCB)), 's_lshl_b32 %s, %s, 10' % (sr(sOO), sr(sOO)),
                           's_lshr_b32 %s, %s, 4' % (sr(sT0), sr(sRB)), 's_lshl_b32 %s, %s, 7' % (sr(sT0), sr(sT0)), 's_add_u32 %s, %s, %s' % (sr(sOO), sr(sOO), sr(sT0)), 's_add_u32 %s, %s, %d' % (sr(sOO), sr(sOO), UF)]
                    chk = Prog(); fu = g.simple_poll(mid, chk, g.vUF, off, sOO, 2, ['uok'])
                if a == 0 and gi == 3:
                    mid.extend(chk); mid.extend(g.u_dma(['uok', 'gwrd', 'barD'])); g.F(fu, 2)
                if a == 2 and gi == 1: mid.extend(g.wout_dma(0, ['barW1']))
                P.extend(g.granule(4 * a + gi, acc, zf, mid.groups))
            P('s_barrier', needs=(['cprd', 'wdrd'] if a == 0 else ['rr%d' % (a - 1)]), gives=['barR%d' % a])
            P.extend(g.reduce_epi(a, acc, z1, bar_needs={0: ['ud'], 1: ['urd'], 2: ['zr10', 'zr11']}[a]))
            if a == 0:
                P('s_nop 0', needs=['barW0'], gives=['barU'])
                P.extend(g.ypart(acc3))
            g.ts(P, 'third%d' % a) if a == 2 else None
        g.F(acc, 32); g.F(zf, 32); g.F(z1, 24)
        hf = [g.A(32, 4) for _ in range(3)]
        chk = [Prog(), Prog(), Prog()]; fs = []
        for a in range(2): fs.append(g.simple_poll(P, chk[a], g.vH4, g.hflag_base(a, sOO if a == 0 else sF), sOO if a == 0 else sF, 1, ['hok%d' % a]))
        P.extend(g.wout_dma(1, ['barW2']))
        g.hflag(P, 2)
        P.extend(g.wout_dma(2, ['barW2']))
        for a in range(2):
            P.extend(chk[a]); P.extend(g.h_loads(a, hf[a], ['hok%d' % a]))
        P('s_barrier', needs=['wo0', 'wo1', 'wo2'], gives=['barO'])
        fs.append(g.simple_poll(P, chk[2], g.vH4, g.hflag_base(2, sOO), sOO, 1, ['hok2']))
        Q = Prog()
        g.tr_ksteps(Q, [(g.vOR[a], 5120 * c, vr(hf[a] + 4 * c, 4), ['barO'], []) for a in range(2) for c in range(8)], acc3)
        half = len(Q.groups) // 2
        P.extend(Q.groups[:half]); P.extend(chk[2]); g.ts(P, 'hok2'); P.extend(g.h_loads(2, hf[2], ['hok2'])); P.extend(Q.groups[half:])
        g.tr_ksteps(P, [(g.vOR[2], 5120 * c, vr(hf[2] + 4 * c, 4), ['barO'], []) for c in range(8)], acc3)
        pk = g.A(10)
        P.group([I('s_mul_i32 %s, %s, 160' % (sr(sT0), sr(sCB))), I('s_add_u32 %s, %s, %s' % (sr(sT0), sr(sT0), sr(sX)))])
        for b in range(5):
            for h in range(2): P('v_cvt_pk_bf16_f32 %s, %s, %s' % (vr(pk + 2 * b + h), vr(acc3 + 4 * b + 2 * h), vr(acc3 + 4 * b + 2 * h + 1)))
            P('buffer_store_dwordx2 %s, %s, %s, %s offen offset:%d' % (vr(pk + 2 * b, 2), vr(g.vOS), srd('out'), sr(sT0), 32 * b))
        P.group([I('s_or_b32 %s, s2, %s' % (sr(sT0), sr(sW))), I('s_cmp_lg_u32 %s, 0' % sr(sT0)), I('s_cbranch_scc1 L_noep'),
                 I('s_add_u32 %s, %s, 1' % (sr(sT0), sr(sEP))), I('v_mov_b32 %s, %s' % (vr(g.vTAG), sr(sT0))), I('s_mov_b64 exec, 1'),
                 I('buffer_store_dword %s, %s, %s, 0 offen sc1' % (vr(g.vTAG), vr(g.vZERO), srd('ws'))), I('s_mov_b64 exec, -1'), I('L_noep:')])
        if g.opt.get('ts'):
            P('s_waitcnt vmcnt(0)'); g.ts(P, 'end'); P('s_waitcnt lgkmcnt(0)')
            P.group([I('s_lshl_b32 %s, s2, 2' % sr(sT0)), I('s_add_u32 %s, %s, %s' % (sr(sT0), sr(sT0), sr(sW))), I('s_lshl_b32 %s, %s, 6' % (sr(sT0), sr(sT0))), I('s_add_u32 %s, %s, %d' % (sr(sT0), sr(sT0), TS))])
            for k in range(g.nts):
                P('v_mov_b32 %s, %s' % (vr(pk), sr(sTS + 2 * k))); P('buffer_store_dword %s, %s, %s, %s offen offset:%d' % (vr(pk), vr(g.vZERO), srd('ws'), sr(sT0), 4 * k))
        P('s_endpgm')
        lines = finalize(P, verbose=True)
        lines += [x if x.endswith(':') else '    ' + x for x in g.slow]
        lines += ['L_end:', '    s_endpgm']
        print('vgpr high water', g.ra.hw)
        return lines

def make(opt):
    g = Gen(opt); lines = g.build()
    s = HEAD + '; @launch grid=(256,1,1) block=(256,1,1) lds=%d\n' % LDS_SIZE
    s += '.amdgcn_target "amdgcn-amd-amdhsa--gfx950"\n.text\n.globl %s\n.p2align 8\n.type %s,@function\n%s:\n' % (NAME, NAME, NAME)
    s += '\n'.join(lines) + '\n'
    s += '''.section .rodata,"a"
.p2align 6
.amdhsa_kernel %s
  .amdhsa_next_free_vgpr 512
  .amdhsa_next_free_sgpr 102
  .amdhsa_accum_offset 256
  .amdhsa_group_segment_fixed_size 0
  .amdhsa_kernarg_size 112
  .amdhsa_user_sgpr_count 2
  .amdhsa_user_sgpr_kernarg_segment_ptr 1
  .amdhsa_system_sgpr_workgroup_id_x 1
  .amdhsa_float_denorm_mode_32 3
.end_amdhsa_kernel
''' % NAME
    return s, g.ts_labels

if __name__ == '__main__':
    s, _ = make({}); open('k1.s', 'w').write(s)
    s, lab = make({'ts': 1}); open('k1_ts.s', 'w').write(s); open('k1_ts.labels', 'w').write(','.join(lab))
```

```python
import sys, math
from asmlib import *

NAME = 'gated_mix__spectral_fnet__mixer_gmlp__prompt_kernel'
HEAD = open('gated_mix__spectral_fnet__mixer_gmlp__prompt.s.ref').read().split('; Override launch')[0]
MB = 1 << 20
EPOCH, ZF, UF, PF, HF, ST = 0, 4096, 8192, 12288, 16384, 65536
Z2, H, U, WZ1, WO, TS = 1 * MB, 4 * MB, 8 * MB, 14 * MB, 15 * MB, 32 * MB
WS_SIZE = 40 * MB
PSZ = 20480; S = 81920; SLOT = 12288; M = 143360; LDS_SIZE = 163840
WD = S; WDP = 16384; CP = S + 36864; CPP = 7680; GW = M; RED = S; UL = M; WO0 = S + 32768
SRD = dict(x=4, win=8, wsp=12, wout=16, hre=20, him=24, sre=28, sim=32, out=36, ws=40, bsp=44, gw=48, code=52)
KOFF = dict(x=0, sre=8, sim=16, hre=24, him=32, win=48, wsp=56, bsp=64, wout=72, gw=80, out=88, ws=104)
SZ = dict(x=2048*640*2, sre=2048*2048*2, sim=2048*2048*2, hre=640*640*2, him=640*640*2, win=640*1536*2, wsp=2048*2048*2,
          bsp=4096, wout=768*640*2, gw=1280, out=2048*640*2, ws=WS_SIZE)
def srd(n): return sr(SRD[n], 4)
sRB, sCB, sW, sTAG, sEP, sP = 56, 57, 58, 59, 60, 61
sX, sWZ, sW1, sT0, sT1, sT2, sT3 = 62, 63, 64, 65, 66, 67, 68
sS = 69
sZ, sHB, sF, sTT, sC5120, sCNT, sWDO, sOO, sUD, sUM = 73, 74, 75, 76, 77, 78, 79, 80, 81, 82
sBG = 83
sTS = 84

class Gen:
    def __init__(g, opt):
        g.opt = opt; g.ra = RA(1, 256); g.slow = []; g.npoll = 0; g.nts = 0
    def A(g, n=1, align=None): return g.ra.alloc(n, align)
    def F(g, b, n=1):
        if g.holding is not None: g.holding.append((b, n))
        else: g.ra.free(b, n)
    holding = None
    def hold(g): g.holding = []
    def unhold(g):
        h = g.holding; g.holding = None; return h
    def release(g, h):
        for b, n in h: g.ra.free(b, n)
    def ts(g, P, label):
        if not g.opt.get('ts'): return
        k = g.nts; g.nts += 1; g.ts_labels.append(label)
        assert k < 9
        P('s_memrealtime %s' % sr(sTS + 2 * k, 2))
    ts_labels = []

    def dma(g, P, vaddr, buf, soff, lds, imm=0, needs=(), gives=(), private=True, pre=None, flags=''):
        t = []
        if lds - imm < 0:
            assert pre is None
            pre = 's_add_u32 s52, %s, %d' % (soff, imm); soff = 's52'; imm = 0
        if private: t.append('s_add_u32 m0, %s, %d' % (sr(sP), lds - imm))
        else: t.append('s_mov_b32 m0, %d' % (lds - imm))
        if pre: t.append(pre)
        grp = [I(x) for x in t]
        grp.append(I('buffer_load_dwordx4 %s, %s, %s offen%s%s lds' % (vr(vaddr), srd(buf), soff, ' offset:%d' % imm if imm else '', flags), needs, gives))
        P.group(grp)
    def poll_issue(g, P, regs, loads):
        for l in loads: P(l)
    def poll_check(g, P, loads, cmpcode, gives=()):
        n = g.npoll; g.npoll += 1
        grp = [I(x) for x in cmpcode] + [I('s_cbranch_vccnz L_slow%d' % n), I('L_back%d:' % n)]
        P.group(grp)
        if gives: P('s_nop 0', gives=gives)
        s = ['L_slow%d:' % n, 's_mov_b32 %s, 200000' % sr(sCNT), 'L_sl%d:' % n, 's_sleep %d' % g.opt.get('pollsleep', 4)] + list(loads) + ['s_waitcnt vmcnt(0)']
        for c in cmpcode: s += [c, 's_nop 1']
        s += ['s_cbranch_vccz L_back%d' % n, 's_sub_u32 %s, %s, 1' % (sr(sCNT), sr(sCNT)), 's_cmp_lg_u32 %s, 0' % sr(sCNT), 's_cbranch_scc1 L_sl%d' % n, 's_branch L_back%d' % n]
        g.slow += s
    def flag_store(g, P, soff_code, needs):
        grp = [I(x) for x in soff_code]
        grp += [I('s_mov_b64 exec, 1', needs), I('buffer_store_dword %s, %s, %s, %s offen sc1' % (vr(g.vTAG), vr(g.vZERO), srd('ws'), sr(sT3))), I('s_mov_b64 exec, -1')]
        P.group(grp)
    def xreduce(g, P, v, t):
        P('v_mov_b32 %s, %s' % (vr(t), vr(v))); P('v_permlane32_swap_b32 %s, %s' % (vr(t), vr(v))); P('v_add_f32 %s, %s, %s' % (vr(v), vr(v), vr(t)))
        P('v_mov_b32 %s, %s' % (vr(t), vr(v))); P('v_permlane16_swap_b32 %s, %s' % (vr(t), vr(v))); P('v_add_f32 %s, %s, %s' % (vr(v), vr(v), vr(t)))
    def gelu(g, P, x, n):
        C = vr(g.vGC, 2)
        B = 4
        t = g.A(2 * B)
        for p0 in range(0, n // 2, B):
            prs = range(p0, min(p0 + B, n // 2))
            X = lambda p: vr(x + 2 * p, 2); T = lambda p: vr(t + 2 * (p - p0), 2)
            for p in prs: P('v_pk_mul_f32 %s, %s, %s' % (T(p), X(p), X(p)))
            for p in prs: P('v_pk_fma_f32 %s, %s, %s, %s op_sel:[0,1,0] op_sel_hi:[1,1,0]' % (T(p), T(p), C, C))
            for p in prs: P('v_pk_mul_f32 %s, %s, %s' % (T(p), T(p), X(p)))
            for p in prs:
                for h in range(2): P('v_exp_f32 %s, %s' % (vr(t + 2 * (p - p0) + h), vr(t + 2 * (p - p0) + h)))
            for p in prs: P('v_pk_add_f32 %s, %s, 1.0 op_sel_hi:[1,0]' % (T(p), T(p)))
            for p in prs:
                for h in range(2): P('v_rcp_f32 %s, %s' % (vr(t + 2 * (p - p0) + h), vr(t + 2 * (p - p0) + h)))
            for p in prs: P('v_pk_mul_f32 %s, %s, %s' % (X(p), X(p), T(p)))
        g.F(t, 2 * B)

    def prologue(g):
        P = Prog()
        P('s_cmp_ge_u32 s2, 256\ns_cbranch_scc1 L_end')
        for n in ('x', 'win', 'ws', 'gw', 'bsp', 'wsp', 'hre', 'him', 'sre', 'sim', 'wout', 'out'):
            P('s_load_dwordx2 %s, s[0:1], %d' % (sr(SRD[n], 2), KOFF[n]))
        g.ts(P, 'start')
        if g.opt.get('spin'): P('s_memrealtime s[84:85]')
        t0 = g.A(); t1 = g.A(); t2 = g.A()
        P('v_lshrrev_b32 %s, 6, v0' % vr(t0)); P('v_and_b32 v0, 63, v0'); P('v_readfirstlane_b32 %s, %s' % (sr(sW), vr(t0)))
        g.vL16 = g.A(); P('v_lshlrev_b32 %s, 4, v0' % vr(g.vL16))
        c = SRD['code']
        P('s_getpc_b64 %s' % sr(c, 2)); P('s_mov_b32 %s, L_end-%s-256' % (sr(c + 2), NAME)); P('s_mov_b32 %s, 0x20000' % sr(c + 3))
        P('s_lshr_b32 %s, s2, 3' % sr(sT0)); P('s_lshl_b32 %s, %s, 2' % (sr(sT1), sr(sT0))); P('s_add_u32 %s, %s, %s' % (sr(sT1), sr(sT1), sr(sW))); P('s_lshl_b32 %s, %s, 10' % (sr(sT1), sr(sT1)))
        g.vJ = g.A(4, 4)
        if g.opt.get('codepf', 1): P('buffer_load_dwordx4 %s, %s, %s, %s offen' % (vr(g.vJ, 4), vr(g.vL16), srd('code'), sr(sT1)))
        P('s_and_b32 %s, s2, 1' % sr(sCB)); P('s_lshl_b32 %s, %s, 2' % (sr(sCB), sr(sCB))); P('s_and_b32 %s, %s, 3' % (sr(sT1), sr(sT0))); P('s_add_u32 %s, %s, %s' % (sr(sCB), sr(sCB), sr(sT1)))
        P('s_and_b32 %s, s2, 6' % sr(sRB)); P('s_lshl_b32 %s, %s, 2' % (sr(sRB), sr(sRB))); P('s_lshr_b32 %s, %s, 2' % (sr(sT1), sr(sT0))); P('s_add_u32 %s, %s, %s' % (sr(sRB), sr(sRB), sr(sT1)))
        P('s_mul_i32 %s, %s, %d' % (sr(sP), sr(sW), PSZ))
        P('s_mul_i32 %s, %s, 1280' % (sr(sX), sr(sRB))); P('s_mul_i32 %s, %s, %d' % (sr(sT1), sr(sW), 16 * 40960)); P('s_add_u32 %s, %s, %s' % (sr(sX), sr(sX), sr(sT1)))
        P('s_mul_i32 %s, %s, 192' % (sr(sW1), sr(sCB))); P('s_add_u32 %s, %s, 1536' % (sr(sWZ), sr(sW1)))
        for n in ('x', 'win'):
            P('s_mov_b32 %s, %d' % (sr(SRD[n] + 2), SZ[n])); P('s_mov_b32 %s, 0x20000' % sr(SRD[n] + 3))
        g.vG = g.A(); g.vI = g.A()
        P('v_lshrrev_b32 %s, 4, v0' % vr(g.vG)); P('v_and_b32 %s, 15, v0' % vr(g.vI))
        g.vXD = [g.A(), g.A()]
        P('v_lshrrev_b32 %s, 3, v0' % vr(t0)); P('v_mul_u32_u24 %s, 40960, %s' % (vr(t0), vr(t0)))
        P('v_and_b32 %s, 7, v0' % vr(t1)); P('v_xor_b32 %s, %s, %s' % (vr(t1), vr(t1), vr(g.vG))); P('v_lshl_add_u32 %s, %s, 4, %s' % (vr(g.vXD[0]), vr(t1), vr(t0)))
        P('v_xor_b32 %s, 64, %s' % (vr(t0), vr(g.vXD[0]))); P('v_add_u32 %s, 327680, %s' % (vr(g.vXD[1]), vr(t0)))
        g.vWD = [g.A(), g.A(), g.A()]
        P('s_mul_i32 %s, %s, 192' % (sr(sT1), sr(sW)))
        for v in range(3):
            P('v_add_u32 %s, %s, v0' % (vr(t0), sr(sT1)))
            if v: P('v_add_u32 %s, %d, %s' % (vr(t0), 64 * v, vr(t0)))
            P('v_mul_u32_u24 %s, 5462, %s' % (vr(t1), vr(t0))); P('v_lshrrev_b32 %s, 16, %s' % (vr(t1), vr(t1)))
            P('v_mul_u32_u24 %s, 12, %s' % (vr(t2), vr(t1))); P('v_sub_u32 %s, %s, %s' % (vr(t0), vr(t0), vr(t2)))
            P('v_lshrrev_b32 %s, 2, %s' % (vr(t2), vr(t1))); P('v_and_b32 %s, 2, %s' % (vr(t2), vr(t2))); P('v_xor_b32 %s, %s, %s' % (vr(t0), vr(t0), vr(t2)))
            P('v_mul_u32_u24 %s, 3072, %s' % (vr(t1), vr(t1))); P('v_lshl_add_u32 %s, %s, 4, %s' % (vr(g.vWD[v]), vr(t0), vr(t1)))
        P('s_mul_i32 %s, %s, 3072' % (sr(sWDO), sr(sW))); P('s_add_u32 %s, %s, %d' % (sr(sWDO), sr(sWDO), S))
        for n in ('ws', 'gw', 'bsp', 'wsp', 'hre', 'him', 'sre', 'sim', 'wout', 'out'):
            P('s_mov_b32 %s, %d' % (sr(SRD[n] + 2), SZ[n])); P('s_mov_b32 %s, 0x20000' % sr(SRD[n] + 3))
        P('s_waitcnt lgkmcnt(0)')
        P('s_load_dword %s, %s, %d' % (sr(sEP), sr(SRD['ws'], 2), EPOCH))
        g.F(t0); g.F(t1); g.F(t2)
        return P

    def chunk_loads(g, ch):
        P = Prog()
        need = ['bar%d' % (ch - 4)] if ch >= 5 else []
        if ch < 10:
            for hf in range(2):
                g.dma(P, g.vXD[hf], 'x', sr(sX), 2048 * ch + 1024 * hf, imm=128 * ch, gives=['x%d' % ch])
        base = sWZ if ch < 10 else sW1
        for v in range(3):
            grp = [I('s_add_u32 m0, %s, %d' % (sr(sWDO), SLOT * (ch % 5) + 1024 * v))]
            grp.append(I('s_add_u32 %s, %s, %d' % (sr(sBG), sr(base), 196608 * (ch % 10))))
            grp.append(I('buffer_load_dwordx4 %s, %s, %s offen lds' % (vr(g.vWD[v]), srd('win'), sr(sBG)), need, ['w%d' % ch]))
            P.group(grp)
        return P

    def setup2(g):
        P = Prog(); t0 = g.A(); t1 = g.A()
        g.vXR = [g.A(), g.A()]
        P('v_lshrrev_b32 %s, 1, %s' % (vr(t0), vr(g.vI))); P('v_xor_b32 %s, %s, %s' % (vr(t0), vr(t0), vr(g.vG))); P('v_lshlrev_b32 %s, 4, %s' % (vr(t0), vr(t0)))
        g.vSWZ = g.A(); P('v_mov_b32 %s, %s' % (vr(g.vSWZ), vr(t0)))
        P('v_lshl_add_u32 %s, %s, 7, %s' % (vr(t0), vr(g.vI), vr(t0))); P('v_add_u32 %s, %s, %s' % (vr(g.vXR[0]), sr(sP), vr(t0))); P('v_xor_b32 %s, 64, %s' % (vr(g.vXR[1]), vr(g.vXR[0])))
        g.vTA = [g.A(), g.A()]
        P('v_bfe_u32 %s, v0, 2, 2' % vr(t0)); P('v_lshl_add_u32 %s, %s, 3, %s' % (vr(t0), vr(g.vG), vr(t0))); P('v_mul_u32_u24 %s, 192, %s' % (vr(t0), vr(t0)))
        P('v_and_b32 %s, 3, v0' % vr(t1)); P('v_lshl_add_u32 %s, %s, 3, %s' % (vr(t0), vr(t1), vr(t0))); P('v_add_u32 %s, %d, %s' % (vr(t0), S, vr(t0)))
        P('v_and_b32 %s, 1, %s' % (vr(t1), vr(g.vG))); P('v_lshlrev_b32 %s, 5, %s' % (vr(t1), vr(t1)))
        P('v_add_u32 %s, %s, %s' % (vr(g.vTA[0]), vr(t0), vr(t1))); P('v_sub_u32 %s, %s, %s' % (vr(g.vTA[1]), vr(t0), vr(t1)))
        g.F(t0); g.F(t1)
        return P

    def setup3(g):
        P = Prog(); t0 = g.A(); t1 = g.A()
        g.vZERO = g.A(); P('v_mov_b32 %s, 0' % vr(g.vZERO))
        g.vTAG = g.A()
        P('s_add_u32 %s, %s, 1' % (sr(sT0), sr(sEP))); P('s_mul_i32 %s, %s, 0x9E3779B1' % (sr(sT0), sr(sT0))); P('s_xor_b32 %s, %s, 0x5bd1e995' % (sr(sTAG), sr(sT0)))
        P('v_mov_b32 %s, %s' % (vr(g.vTAG), sr(sTAG)))
        g.vGC = g.A(2)
        c1 = -2 * math.log2(math.e) * math.sqrt(2 / math.pi)
        P('v_mov_b32 %s, %s' % (vr(g.vGC), fh(c1))); P('v_mov_b32 %s, %s' % (vr(g.vGC + 1), fh(c1 * 0.044715)))
        P.group([I('s_mul_i32 %s, %s, 320' % (sr(sT0), sr(sW))), I('s_add_u32 m0, %s, %d' % (sr(sT0), GW)), I('s_mov_b64 exec, 0xfffff'),
                 I('buffer_load_dwordx4 %s, %s, %s offen lds' % (vr(g.vL16), srd('gw'), sr(sT0)), gives=['gw']), I('s_mov_b64 exec, -1')])
        g.vB = g.A()
        P('v_lshlrev_b32 %s, 6, %s' % (vr(t0), vr(g.vI)))
        P.group([I('s_lshl_b32 %s, %s, 10' % (sr(sT0), sr(sW))), I('s_lshl_b32 %s, %s, 1' % (sr(sT1), sr(sRB))), I('s_add_u32 %s, %s, %s' % (sr(sT0), sr(sT0), sr(sT1))),
                 I('buffer_load_ushort %s, %s, %s, %s offen' % (vr(g.vB), vr(t0), srd('bsp'), sr(sT0)))])
        g.vSD = [g.A() for _ in range(4)]
        for u in range(4):
            P('v_add_u32 %s, %d, %s' % (vr(t0), 4 * u, vr(g.vG))); P('v_xor_b32 %s, %s, %s' % (vr(t1), vr(t0), vr(g.vI)))
            P('v_lshlrev_b32 %s, 17, %s' % (vr(t0), vr(t0))); P('v_lshl_add_u32 %s, %s, 4, %s' % (vr(g.vSD[u]), vr(t1), vr(t0)))
        P.group([I('s_lshl_b32 %s, %s, 12' % (sr(sT0), sr(sRB))), I('s_lshl_b32 %s, %s, 10' % (sr(sT1), sr(sW))), I('s_add_u32 %s, %s, %s' % (sr(sS), sr(sT0), sr(sT1)))] +
                [I('s_add_u32 %s, %s, %d' % (sr(sS + k), sr(sS), 16 * 131072 * k)) for k in range(1, 4)])
        g.vSR = [g.A() for _ in range(8)]
        P('v_lshrrev_b32 %s, 5, v0' % vr(t0)); P('v_lshlrev_b32 %s, 2, %s' % (vr(t0), vr(t0))); P('v_xor_b32 %s, %s, %s' % (vr(t0), vr(t0), vr(g.vI))); P('v_lshlrev_b32 %s, 4, %s' % (vr(t0), vr(t0)))
        P('v_and_b32 %s, 31, v0' % vr(t1)); P('v_lshl_add_u32 %s, %s, 8, %s' % (vr(t0), vr(t1), vr(t0))); P('v_add_u32 %s, %s, %s' % (vr(g.vSR[0]), sr(sP), vr(t0)))
        for j in range(1, 8): P('v_xor_b32 %s, %d, %s' % (vr(g.vSR[j]), 16 * (8 * (j >> 2) + (j & 3)), vr(g.vSR[0])))
        g.vFT = g.A(); P('v_lshlrev_b32 %s, 17, %s' % (vr(t0), vr(g.vI))); P('v_lshl_add_u32 %s, %s, 4, %s' % (vr(g.vFT), vr(g.vG), vr(t0)))
        P.group([I('s_lshl_b32 %s, %s, 21' % (sr(sF), sr(sW))), I('s_lshl_b32 %s, %s, 12' % (sr(sT0), sr(sRB))), I('s_add_u32 %s, %s, %s' % (sr(sTT), sr(sF), sr(sT0)))])
        P('s_mov_b32 %s, 5120' % sr(sC5120))
        g.vZS = g.A(); P('v_lshlrev_b32 %s, 6, %s' % (vr(t0), vr(g.vI))); P('v_lshl_add_u32 %s, %s, 4, %s' % (vr(g.vZS), vr(g.vG), vr(t0)))
        P.group([I('s_mul_i32 %s, %s, 12' % (sr(sT0), sr(sCB))), I('s_add_u32 %s, %s, %s' % (sr(sT0), sr(sT0), sr(sW))), I('s_lshl_b32 %s, %s, 15' % (sr(sT0), sr(sT0))), I('s_add_u32 %s, %s, %d' % (sr(sZ), sr(sT0), Z2))])
        P.group([I('s_lshl_b32 %s, %s, 2' % (sr(sT0), sr(sRB))), I('s_add_u32 %s, %s, %s' % (sr(sT0), sr(sT0), sr(sW))), I('s_mul_i32 %s, %s, 24576' % (sr(sT0), sr(sT0))), I('s_add_u32 %s, %s, %d' % (sr(sHB), sr(sT0), H))])
        g.vDD = [g.A() for _ in range(4)]; t2 = g.A()
        for v in range(4):
            P.group([I('s_lshl_b32 %s, %s, 8' % (sr(sT0), sr(sW))), I('s_add_u32 %s, %s, %d' % (sr(sT0), sr(sT0), 64 * v)), I('v_add_u32 %s, %s, v0' % (vr(t0), sr(sT0)))])
            P('v_mul_u32_u24 %s, 2731, %s' % (vr(t1), vr(t0))); P('v_lshrrev_b32 %s, 16, %s' % (vr(t1), vr(t1)))
            P('v_mul_u32_u24 %s, 24, %s' % (vr(t2), vr(t1))); P('v_sub_u32 %s, %s, %s' % (vr(t0), vr(t0), vr(t2)))
            P('v_bfe_u32 %s, %s, 1, 3' % (vr(t2), vr(t1))); P('v_xor_b32 %s, %s, %s' % (vr(t0), vr(t0), vr(t2)))
            P('v_mul_u32_u24 %s, 1280, %s' % (vr(t1), vr(t1))); P('v_lshl_add_u32 %s, %s, 4, %s' % (vr(g.vDD[v]), vr(t0), vr(t1)))
        g.F(t0); g.F(t1); g.F(t2)
        return P

    def gemm1(g, ch0, acc, extra_loads, first_bar_needs=()):
        P = Prog(); isz = ch0 == 0
        af = [g.A(24, 4), g.A(24, 4)]
        def reads(ks):
            L = []; ch = ch0 + (ks >> 1); ksl = ks & 1; tok = ['rd%d' % ch]
            if isz: L.append([I('ds_read_b128 %s, %s offset:%d' % (vr(g.xf + 4 * ks, 4), vr(g.vXR[ksl]), 2048 * (ks >> 1)), ['x%d' % ch], ['xread'])])
            for b in range(6):
                for kk in range(2):
                    L.append([I('ds_read_b64_tr_b16 %s, %s offset:%d' % (vr(af[ks & 1] + 4 * b + 2 * kk, 2), vr(g.vTA[b & 1]), SLOT * (ch % 5) + 192 * (32 * ksl + 4 * kk) + 32 * b), ['bar%d' % ch], tok)])
            return L
        def mfmas(ks):
            return [[I('v_mfma_f32_16x16x32_bf16 %s, %s, %s, %s' % (vr(acc + 4 * b, 4), vr(af[ks & 1] + 4 * b, 4), vr(g.xf + 4 * ks, 4), vr(acc + 4 * b, 4) if ks else '0'))] for b in range(6)]
        def mix(a, b, c=()):
            out = []; b = list(b); c = list(c); n = max(len(a), 1)
            for k in range(n):
                if k < len(a): out.append(a[k])
                nb = -(-len(b) // (n - k)); out += b[:nb]; b = b[nb:]
                nc = -(-len(c) // (n - k)); out += c[:nc]; c = c[nc:]
            return out
        for c in range(10):
            ch = ch0 + c
            needs = ['w%d' % ch] + (['rd%d' % (ch - 1)] if ch > 0 else []) + (list(first_bar_needs) if c == 0 else [])
            P('s_barrier', needs=needs, gives=['bar%d' % ch])
            ld = []
            if ch + 4 < 20: ld += g.chunk_loads(ch + 4).groups
            if ch in extra_loads: ld += extra_loads[ch].groups
            h = (len(ld) + 1) // 2
            P.extend(mix(mfmas(2 * c - 1) if c else [], reads(2 * c), ld[:h]))
            P.extend(mix(mfmas(2 * c), reads(2 * c + 1), ld[h:]))
        P.extend(mfmas(19))
        g.F(af[0], 24); g.F(af[1], 24)
        return P

    def stats_publish(g, zz):
        P = Prog(); s = g.A(4, 4); q = g.A(2); t = g.A()
        P('v_pk_add_f32 %s, %s, %s' % (vr(s, 2), vr(zz, 2), vr(zz + 2, 2))); P('v_pk_mul_f32 %s, %s, %s' % (vr(q, 2), vr(zz, 2), vr(zz, 2)))
        P('v_pk_fma_f32 %s, %s, %s, %s' % (vr(q, 2), vr(zz + 2, 2), vr(zz + 2, 2), vr(q, 2)))
        for p in range(2, 12):
            P('v_pk_add_f32 %s, %s, %s' % (vr(s, 2), vr(s, 2), vr(zz + 2 * p, 2))); P('v_pk_fma_f32 %s, %s, %s, %s' % (vr(q, 2), vr(zz + 2 * p, 2), vr(zz + 2 * p, 2), vr(q, 2)))
        P('v_add_f32 %s, %s, %s' % (vr(s), vr(s), vr(s + 1))); P('v_add_f32 %s, %s, %s' % (vr(s + 2), vr(q), vr(q + 1)))
        g.xreduce(P, s, t); g.xreduce(P, s + 2, t)
        P('v_mov_b32 %s, %s' % (vr(s + 1), sr(sTAG))); P('v_mov_b32 %s, %s' % (vr(s + 3), sr(sTAG)))
        P.group([I('s_lshl_b32 %s, %s, 2' % (sr(sT0), sr(sRB))), I('s_add_u32 %s, %s, %s' % (sr(sT0), sr(sT0), sr(sW))), I('s_lshl_b32 %s, %s, 11' % (sr(sT0), sr(sT0))),
                 I('s_add_u32 %s, %s, %d' % (sr(sOO), sr(sT0), ST)), I('s_lshl_b32 %s, %s, 8' % (sr(sT1), sr(sCB))), I('s_add_u32 %s, %s, %s' % (sr(sT0), sr(sOO), sr(sT1))),
                 I('s_mov_b64 exec, 0xffff'), I('buffer_store_dwordx4 %s, %s, %s, %s offen sc1' % (vr(s, 4), vr(g.vL16), srd('ws'), sr(sT0))), I('s_mov_b64 exec, -1')])
        g.F(s, 4); g.F(q, 2); g.F(t)
        return P

    def stats_loads(g):
        return ['buffer_load_dwordx4 %s, %s, %s, %s offen sc1' % (vr(g.vST, 4), vr(g.vL16), srd('ws'), sr(sOO)),
                'buffer_load_dwordx4 %s, %s, %s, %s offen offset:1024 sc1' % (vr(g.vST + 4, 4), vr(g.vL16), srd('ws'), sr(sOO))]
    def normalize(g, zz):
        P = Prog(); st = g.vST; t = g.A(2)
        cmpc = ['v_xor_b32 %s, %s, %s' % (vr(t), sr(sTAG), vr(st + 1)), 'v_xor_b32 %s, %s, %s' % (vr(t + 1), sr(sTAG), vr(st + 3)), 'v_or_b32 %s, %s, %s' % (vr(t), vr(t), vr(t + 1)),
                'v_xor_b32 %s, %s, %s' % (vr(t + 1), sr(sTAG), vr(st + 5)), 'v_or_b32 %s, %s, %s' % (vr(t), vr(t), vr(t + 1)),
                'v_xor_b32 %s, %s, %s' % (vr(t + 1), sr(sTAG), vr(st + 7)), 'v_or_b32 %s, %s, %s' % (vr(t), vr(t), vr(t + 1)), 'v_cmp_ne_u32 vcc, 0, %s' % vr(t)]
        g.poll_check(P, g.stats_loads(), cmpc)
        g.ts(P, 'stats_ok')
        P('v_add_f32 %s, %s, %s' % (vr(st), vr(st), vr(st + 4))); P('v_add_f32 %s, %s, %s' % (vr(st + 2), vr(st + 2), vr(st + 6)))
        g.xreduce(P, st, t); g.xreduce(P, st + 2, t)
        P('v_mul_f32 %s, %s, %s' % (vr(st), fh(1 / 768), vr(st))); P('v_mul_f32 %s, %s, %s' % (vr(st + 2), fh(1 / 768), vr(st + 2)))
        P('v_fma_f32 %s, -%s, %s, %s' % (vr(st + 2), vr(st), vr(st), vr(st + 2))); P('v_max_f32 %s, 0, %s' % (vr(st + 2), vr(st + 2))); P('v_add_f32 %s, %s, %s' % (vr(st + 2), fh(1e-5), vr(st + 2)))
        P('v_rsq_f32 %s, %s' % (vr(st + 2), vr(st + 2))); P('v_mul_f32 %s, %s, %s' % (vr(st + 3), vr(st), vr(st + 2)))
        pk = g.A(12, 4)
        for a in range(3):
            for p in range(4):
                X = vr(zz + 8 * a + 2 * p, 2)
                P('v_pk_fma_f32 %s, %s, %s, %s op_sel:[0,0,1] op_sel_hi:[1,0,1] neg_lo:[0,0,1] neg_hi:[0,0,1]' % (X, X, vr(st + 2, 2), vr(st + 2, 2)))
            for p in range(4): P('v_cvt_pk_bf16_f32 %s, %s, %s' % (vr(pk + 4 * a + p), vr(zz + 8 * a + 2 * p), vr(zz + 8 * a + 2 * p + 1)))
            P.group([I('s_lshl_b32 %s, %s, 10' % (sr(sT0), sr(sRB))), I('s_add_u32 %s, %s, %s' % (sr(sT0), sr(sT0), sr(sZ))), I('s_add_u32 %s, %s, %d' % (sr(sT0), sr(sT0), a * 4 * 32768)),
                     I('buffer_store_dwordx4 %s, %s, %s, %s offen sc1' % (vr(pk + 4 * a, 4), vr(g.vZS), srd('ws'), sr(sT0)), gives=['z2st'])])
        g.F(t, 2); g.F(pk, 12)
        return P
    def colflag_off(g, base):
        return ['s_lshl_b32 %s, %s, 2' % (sr(sT3), sr(sCB)), 's_add_u32 %s, %s, %s' % (sr(sT3), sr(sT3), sr(sW)), 's_lshl_b32 %s, %s, 5' % (sr(sT3), sr(sT3)),
                's_add_u32 %s, %s, %s' % (sr(sT3), sr(sT3), sr(sRB)), 's_lshl_b32 %s, %s, 2' % (sr(sT3), sr(sT3)), 's_add_u32 %s, %s, %d' % (sr(sT3), sr(sT3), base)]

    def gate(g, z1):
        P = Prog(); a = g.A(16, 4); acc = g.A(4, 4); ad = g.A()
        P('v_lshlrev_b32 %s, 4, %s' % (vr(ad), vr(g.vG))); P('v_add_u32 %s, %d, %s' % (vr(ad), GW, vr(ad)))
        rd = lambda ks: 'ds_read_b128 %s, %s offset:%d' % (vr(a + 4 * (ks % 4), 4), vr(ad), 64 * ks)
        for ks in range(3): P(rd(ks), needs=['bar19'])
        for ks in range(20):
            if ks + 3 < 20: P(rd(ks + 3), gives=['gwrd'])
            P('v_mfma_f32_16x16x32_bf16 %s, %s, %s, %s' % (vr(acc, 4), vr(a + 4 * (ks % 4), 4), vr(g.xf + 4 * ks, 4), vr(acc, 4) if ks else '0'))
        g.vGT = g.A(2)
        P('v_mul_f32 %s, %s, %s' % (vr(g.vGT), fh(-math.log2(math.e)), vr(acc))); P('v_exp_f32 %s, %s' % (vr(g.vGT), vr(g.vGT))); P('v_add_f32 %s, 1.0, %s' % (vr(g.vGT), vr(g.vGT)))
        P('v_rcp_f32 %s, %s' % (vr(g.vGT), vr(g.vGT))); P('v_sub_f32 %s, 1.0, %s' % (vr(g.vGT + 1), vr(g.vGT)))
        for p in range(12): P('v_pk_mul_f32 %s, %s, %s op_sel:[0,1] op_sel_hi:[1,1]' % (vr(z1 + 2 * p, 2), vr(z1 + 2 * p, 2), vr(g.vGT, 2)))
        P('v_lshlrev_b32 %s, 16, %s' % (vr(g.vB), vr(g.vB)))
        g.F(a, 16); g.F(acc, 4); g.F(ad)
        return P

    def wd_loads(g, pl):
        P = Prog()
        for v in range(4):
            P.group([I('s_lshl_b32 %s, %s, 12' % (sr(sBG), sr(sW))), I('s_add_u32 m0, %s, %d' % (sr(sBG), WD + WDP * pl + 1024 * v)), I('s_mul_i32 %s, %s, %d' % (sr(sBG), sr(sCB), 40 * 1280)),
                     I('buffer_load_dwordx4 %s, %s, %s offen lds' % (vr(g.vDD[v]), srd('him' if pl else 'hre'), sr(sBG)), ['bar%d' % (17 + pl)], ['wd'])])
        return P

    def cgemm(g):
        P = Prog(); t0 = g.A(); t1 = g.A()
        cr = [[g.A() for _ in range(3)] for _ in range(2)]
        P('v_mul_u32_u24 %s, 384, %s' % (vr(t0), vr(g.vI))); P('v_add_u32 %s, %s, %s' % (vr(t0), vr(t0), vr(g.vSWZ))); P('v_add_u32 %s, %d, %s' % (vr(cr[0][0]), WD, vr(t0)))
        P('v_xor_b32 %s, 64, %s' % (vr(cr[1][0]), vr(cr[0][0])))
        P('v_and_b32 %s, 1, v0' % vr(t1)); P('v_lshlrev_b32 %s, 14, %s' % (vr(t1), vr(t1))); P('v_xor_b32 %s, %d, %s' % (vr(t0), WDP, vr(t1)))
        for par in range(2):
            P('v_add_u32 %s, %s, %s' % (vr(cr[par][1]), vr(cr[par][0]), vr(t1))); P('v_add_u32 %s, %s, %s' % (vr(cr[par][2]), vr(cr[par][0]), vr(t0)))
        sg = g.A(4)
        P('v_lshlrev_b32 %s, 30, v0' % vr(t0)); P('v_and_b32 %s, 0x80000000, %s' % (vr(t0), vr(t0))); P('v_or_b32 %s, 1.0, %s' % (vr(sg), vr(t0)))
        P('v_lshlrev_b32 %s, 31, v0' % vr(t1)); P('v_or_b32 %s, 1.0, %s' % (vr(sg + 1), vr(t1))); P('v_xor_b32 %s, %s, %s' % (vr(sg + 2), vr(sg), vr(t1)))
        cw = g.A()
        P('v_mul_u32_u24 %s, 160, %s' % (vr(t0), vr(g.vI))); P('v_lshl_add_u32 %s, %s, 3, %s' % (vr(t0), vr(g.vG), vr(t0)))
        P.group([I('s_lshl_b32 %s, %s, 5' % (sr(sT0), sr(sW))), I('s_add_u32 %s, %s, %d' % (sr(sT0), sr(sT0), CP)), I('v_add_u32 %s, %s, %s' % (vr(cw), sr(sT0), vr(t0)))])
        g.F(t0); g.F(t1)
        P('s_barrier', needs=['wd', 'rd19'], gives=['barC'])
        acc = g.A(48, 4); bf = [g.A(12, 4), g.A(12, 4)]; pk = g.A(6)
        for o in range(2):
            steps = [(ks0, dp) for ks0 in range(5) for dp in range(2)]
            def rd(n):
                ks0, dp = steps[n]; L = []
                for b in range(3):
                    ad = cr[ks0 & 1][0] if dp == 0 else cr[ks0 & 1][1 + o]
                    imm = 384 * 16 * b + 128 * (ks0 >> 1) + (WDP * o if dp == 0 else 0)
                    L.append([I('ds_read_b128 %s, %s offset:%d' % (vr(bf[n & 1] + 4 * b, 4), vr(ad), imm), ['barC'], ['wdrd'])])
                return L
            P.extend(rd(0))
            for n, (ks0, dp) in enumerate(steps):
                nxt = rd(n + 1) if n + 1 < len(steps) else []
                k = 0
                for d1 in (dp, dp + 2):
                    for b in range(3):
                        ac = vr(acc + 12 * d1 + 4 * b, 4)
                        P('v_mfma_f32_16x16x32_bf16 %s, %s, %s, %s' % (ac, vr(g.xf + 4 * (5 * d1 + ks0), 4), vr(bf[n & 1] + 4 * b, 4), ac if ks0 else '0'))
                        if k < len(nxt) and d1 == dp: P.group(nxt[k]); k += 1
            sgn = [sg, sg + 1, sg + 2] if o == 0 else [sg + 2, sg + 1, sg]
            for d1 in range(1, 4):
                for k in range(12): P('v_fmac_f32 %s, %s, %s' % (vr(acc + k), vr(sgn[d1 - 1]), vr(acc + 12 * d1 + k)))
            for k in range(6): P('v_cvt_pk_bf16_f32 %s, %s, %s' % (vr(pk + k), vr(acc + 2 * k), vr(acc + 2 * k + 1)))
            for b in range(3): P('ds_write_b64 %s, %s offset:%d' % (vr(cw), vr(pk + 2 * b, 2), CPP * o + 2560 * b), gives=['cw'])
            if o == 1:
                pk2 = g.A(6)
                for k in range(6): P('v_xor_b32 %s, 0x80008000, %s' % (vr(pk2 + k), vr(pk + k)))
                for b in range(3): P('ds_write_b64 %s, %s offset:%d' % (vr(cw), vr(pk2 + 2 * b, 2), CPP * 2 + 2560 * b), gives=['cw'])
                g.F(pk2, 6)
        g.F(acc, 48); g.F(bf[0], 12); g.F(bf[1], 12); g.F(pk, 6); g.F(cw); g.F(sg, 4)
        for par in range(2):
            for k in range(3): g.F(cr[par][k])
        return P

    def ft_loads(g):
        P = Prog(); g.vFr = g.A(8, 4); g.vFi = g.A(8, 4); g.vTr = g.A(4, 4); g.vTi = g.A(4, 4)
        for ks in range(2):
            P('buffer_load_dwordx4 %s, %s, %s, %s offen offset:%d' % (vr(g.vFr + 4 * ks, 4), vr(g.vFT), srd('sre'), sr(sF), 64 * ks))
            P('buffer_load_dwordx4 %s, %s, %s, %s offen offset:%d' % (vr(g.vFi + 4 * ks, 4), vr(g.vFT), srd('sim'), sr(sF), 64 * ks))
        P('buffer_load_dwordx4 %s, %s, %s, %s offen' % (vr(g.vTr, 4), vr(g.vFT), srd('sre'), sr(sTT)))
        P('buffer_load_dwordx4 %s, %s, %s, %s offen' % (vr(g.vTi, 4), vr(g.vFT), srd('sim'), sr(sTT)))
        return P

    def step1(g):
        P = Prog(); t0 = g.A(); t1 = g.A(); t2 = g.A()
        nFi = g.A(8, 4)
        for k in range(8): P('v_xor_b32 %s, 0x80008000, %s' % (vr(nFi + k), vr(g.vFi + k)))
        a0 = g.A(); a2 = [g.A(), g.A()]; a2i = [g.A(), g.A()]; a4 = g.A()
        P('v_lshrrev_b32 %s, 2, %s' % (vr(t0), vr(g.vI))); P('v_and_b32 %s, 3, v0' % vr(t1)); P('v_lshl_add_u32 %s, %s, 3, %s' % (vr(t0), vr(t0), vr(t1)))
        P('v_lshlrev_b32 %s, 4, %s' % (vr(t2), vr(g.vG))); P('v_add_u32 %s, %d, %s' % (vr(t2), CP, vr(t2)))
        P('v_mul_u32_u24 %s, 160, %s' % (vr(t1), vr(t0))); P('v_add_u32 %s, %s, %s' % (vr(a0), vr(t1), vr(t2)))
        P('v_cmp_gt_u32 vcc, 4, %s' % vr(g.vI))
        t3 = g.A(); t4 = g.A()
        for fb in range(2):
            P('v_add_u32 %s, %d, %s' % (vr(t3), 32 + 4 * fb, vr(t0))); P('v_sub_u32 %s, %d, %s' % (vr(t4), 48 - 4 * fb, vr(t0))); P('v_cndmask_b32 %s, %s, %s, vcc' % (vr(t3), vr(t4), vr(t3)))
            P('v_mul_u32_u24 %s, 160, %s' % (vr(t3), vr(t3))); P('v_add_u32 %s, %s, %s' % (vr(a2[fb]), vr(t3), vr(t2)))
            P('v_add_u32 %s, %d, %s' % (vr(t3), CPP, vr(a2[fb]))); P('v_add_u32 %s, %d, %s' % (vr(t4), 2 * CPP, vr(a2[fb]))); P('v_cndmask_b32 %s, %s, %s, vcc' % (vr(a2i[fb]), vr(t4), vr(t3)))
        P('v_sub_u32 %s, 16, %s' % (vr(t3), vr(g.vI))); P('v_mul_u32_u24 %s, 160, %s' % (vr(t3), vr(t3))); P('v_add_u32 %s, %s, %s' % (vr(a4), vr(t3), vr(t2)))
        u = [g.A(), g.A(), g.A()]
        P.group([I(x) for x in [
            's_and_b32 %s, %s, 1' % (sr(sT0), sr(sW)), 's_lshl_b32 %s, %s, 7' % (sr(sT0), sr(sT0)), 's_mul_i32 %s, %s, 20480' % (sr(sT0), sr(sT0)),
            's_lshr_b32 %s, %s, 1' % (sr(sT1), sr(sW)), 's_mul_i32 %s, %s, 10240' % (sr(sT1), sr(sT1)), 's_add_u32 %s, %s, %s' % (sr(sT0), sr(sT0), sr(sT1)),
            's_and_b32 %s, %s, 4' % (sr(sT1), sr(sRB)), 's_lshl_b32 %s, %s, 2' % (sr(sT1), sr(sT1)), 's_lshr_b32 %s, %s, 3' % (sr(sT2), sr(sRB)), 's_lshl_b32 %s, %s, 2' % (sr(sT2), sr(sT2)),
            's_add_u32 %s, %s, %s' % (sr(sT1), sr(sT1), sr(sT2)), 's_and_b32 %s, %s, 3' % (sr(sT2), sr(sRB)), 's_add_u32 %s, %s, %s' % (sr(sT1), sr(sT1), sr(sT2)),
            's_mul_i32 %s, %s, 160' % (sr(sT1), sr(sT1)), 's_add_u32 %s, %s, %s' % (sr(sT0), sr(sT0), sr(sT1)), 's_add_u32 %s, %s, %d' % (sr(sT0), sr(sT0), U),
            's_lshr_b32 %s, %s, 1' % (sr(sT1), sr(sCB)), 's_mul_i32 %s, %s, 20480' % (sr(sT1), sr(sT1)), 's_and_b32 %s, %s, 1' % (sr(sT2), sr(sCB)), 's_mul_i32 %s, %s, 80' % (sr(sT2), sr(sT2)),
            's_add_u32 %s, %s, %s' % (sr(sT1), sr(sT1), sr(sT2)),
            's_add_u32 %s, %s, %s' % (sr(sUD), sr(sT0), sr(sT1)), 's_sub_u32 %s, %s, %s' % (sr(sUM), sr(sT0), sr(sT1)), 's_add_u32 %s, %s, %d' % (sr(sUM), sr(sUM), 7 * 20480)]])
        P('v_mov_b32 %s, 163840' % vr(t3)); P('v_mul_u32_u24 %s, %s, %s' % (vr(t3), vr(t3), vr(g.vI)))
        P('v_lshl_add_u32 %s, %s, 4, %s' % (vr(t4), vr(g.vG), vr(t3))); P('v_add_u32 %s, %s, %s' % (vr(u[0]), sr(sUD), vr(t4)))
        P('v_add_u32 %s, %s, %s' % (vr(t4), sr(sUM), vr(t4))); P('v_cmp_eq_u32 vcc, 0, %s' % vr(g.vG)); P('v_cndmask_b32 %s, %s, %s, vcc' % (vr(u[1]), vr(t4), vr(u[0])))
        P('v_lshl_add_u32 %s, %s, 3, %s' % (vr(t4), vr(g.vG), vr(t3))); P('v_add_u32 %s, %s, %s' % (vr(u[2]), sr(sUM), vr(t4)))
        for x in (t0, t1, t2, t3, t4): g.F(x)
        P('s_barrier', needs=['cw'], gives=['barD'])
        D = g.A(40, 4); af = [g.A(16, 4), g.A(16, 4)]; pk = g.A(20, 4)
        def rd(bb):
            L = []
            for ks in range(2):
                if bb < 2: ar_, ai_, ir, ii = a0, a0, 640 * bb, 640 * bb + CPP
                elif bb < 4: ar_, ai_, ir, ii = a2[bb - 2], a2i[bb - 2], 0, 0
                else: ar_, ai_, ir, ii = a4, a4, 0, 2 * CPP
                L.append([I('ds_read_b128 %s, %s offset:%d' % (vr(af[bb & 1] + 4 * ks, 4), vr(ar_), ir + 64 * ks), ['barD'], ['cprd'])])
                L.append([I('ds_read_b128 %s, %s offset:%d' % (vr(af[bb & 1] + 8 + 4 * ks, 4), vr(ai_), ii + 64 * ks), ['barD'], ['cprd'])])
            return L
        P.extend(rd(0))
        for bb in range(5):
            nxt = rd(bb + 1) if bb < 4 else []
            dr = vr(D + 4 * bb, 4); di = vr(D + 20 + 4 * bb, 4); k = 0
            for ks in range(2):
                crf = vr(af[bb & 1] + 4 * ks, 4); cif = vr(af[bb & 1] + 8 + 4 * ks, 4)
                for (d, a_, b_, first) in ((dr, crf, g.vFr, ks == 0), (di, crf, g.vFi, ks == 0), (dr, cif, nFi, False), (di, cif, g.vFr, False)):
                    P('v_mfma_f32_16x16x32_bf16 %s, %s, %s, %s' % (d, a_, vr(b_ + 4 * ks, 4), '0' if first else d))
                    if k < len(nxt): P.group(nxt[k]); k += 1
        for ri in range(2):
            for bb in range(5):
                dst = pk + 8 * ri + 2 * bb if bb < 4 else pk + 16 + 2 * ri
                for h in range(2): P('v_cvt_pk_bf16_f32 %s, %s, %s' % (vr(dst + h), vr(D + 20 * ri + 4 * bb + 2 * h), vr(D + 20 * ri + 4 * bb + 2 * h + 1)))
            so = sr(sC5120) if ri else '0'
            P('buffer_store_dwordx4 %s, %s, %s, %s offen sc1' % (vr(pk + 8 * ri, 4), vr(u[0]), srd('ws'), so), gives=['ust'])
            P('buffer_store_dwordx4 %s, %s, %s, %s offen offset:64 sc1' % (vr(pk + 8 * ri + 4, 4), vr(u[1]), srd('ws'), so), gives=['ust'])
            P('buffer_store_dwordx2 %s, %s, %s, %s offen offset:128 sc1' % (vr(pk + 16 + 2 * ri, 2), vr(u[2]), srd('ws'), so), gives=['ust'])
        g.F(D, 40); g.F(af[0], 16); g.F(af[1], 16); g.F(pk, 20); g.F(nFi, 8); g.F(g.vFr, 8); g.F(g.vFi, 8)
        for x in [a0, a4] + a2 + a2i + u: g.F(x)
        return P

    def wsp_stream(g):
        P = Prog()
        def D(n):
            tb, pp = n >> 2, n & 3
            for u in range(8):
                g.dma(P, g.vSD[u & 3], 'wsp', sr(sS + 2 * tb + (u >> 2)), 8192 * (n & 1) + 1024 * u, imm=256 * pp, needs=['xread'] if n < 2 else ['spr%d' % (n - 2)], gives=['spd%d' % n])
        def R(n):
            tb, pp = n >> 2, n & 3
            for j in range(8):
                p = 2 * pp + (j >> 2); a8 = j & 3
                P('ds_read_b128 %s, %s offset:%d' % (ar(((a8 * 8 + p) * 2 + tb) * 4, 4), vr(g.vSR[j]), 8192 * (n & 1)), needs=['spd%d' % n], gives=['spr%d' % n])
        D(0); D(1)
        for n in range(8):
            R(n)
            if n + 2 < 8: D(n + 2)
        return P

    def z2_dma(g, n):
        P = Prog(); a, gi = divmod(n, 4)
        for i in range(8):
            pre = 's_add_u32 %s, %s, %d' % (sr(sBG), sr(sZ), a * 4 * 32768 + 8192 * gi + 4096 * (i >> 2))
            g.dma(P, g.vL16, 'ws', sr(sBG), 8704 * (n & 1) + 1088 * i, imm=1024 * (i & 3), pre=pre, flags=' sc1',
                  needs=['spr6', 'spr7', 'zok'] if n < 2 else ['zr%d' % (n - 2)], gives=['zd%d' % n])
        return P
    def setup4(g):
        P = Prog(); t0 = g.A(); t1 = g.A()
        g.vZR = g.A()
        P('v_bfe_u32 %s, v0, 2, 2' % vr(t0)); P('v_mul_u32_u24 %s, 1088, %s' % (vr(t0), vr(t0))); P('v_lshl_add_u32 %s, %s, 5, %s' % (vr(t0), vr(g.vG), vr(t0)))
        P('v_and_b32 %s, 3, v0' % vr(t1)); P('v_lshl_add_u32 %s, %s, 3, %s' % (vr(t0), vr(t1), vr(t0))); P('v_add_u32 %s, %s, %s' % (vr(g.vZR), sr(sP), vr(t0)))
        g.vRW = g.A(); g.vRR = g.A()
        P('v_and_b32 %s, 1, %s' % (vr(t0), vr(g.vG))); P('v_lshlrev_b32 %s, 11, %s' % (vr(t0), vr(t0))); P('v_lshrrev_b32 %s, 5, v0' % vr(t1)); P('v_lshl_add_u32 %s, %s, 10, %s' % (vr(t0), vr(t1), vr(t0)))
        P('v_lshl_add_u32 %s, %s, 4, %s' % (vr(t0), vr(g.vI), vr(t0)))
        P.group([I('s_lshl_b32 %s, %s, 13' % (sr(sT0), sr(sW))), I('s_add_u32 %s, %s, %d' % (sr(sT0), sr(sT0), RED)), I('v_add_u32 %s, %s, %s' % (vr(g.vRW), sr(sT0), vr(t0)))])
        P.group([I('s_lshl_b32 %s, %s, 11' % (sr(sT0), sr(sW))), I('s_add_u32 %s, %s, %d' % (sr(sT0), sr(sT0), RED)), I('v_add_u32 %s, %s, %s' % (vr(g.vRR), sr(sT0), vr(g.vL16)))])
        g.vOR = [g.A(), g.A(), g.A()]
        P('v_lshrrev_b32 %s, 2, v0' % vr(t0)); P('v_mul_u32_u24 %s, 160, %s' % (vr(t0), vr(t0))); P('v_and_b32 %s, 3, v0' % vr(t1)); P('v_lshl_add_u32 %s, %s, 3, %s' % (vr(g.vOR[1]), vr(t1), vr(t0)))
        P('v_add_u32 %s, %d, %s' % (vr(g.vOR[0]), WO0, vr(g.vOR[1]))); P('v_add_u32 %s, 40960, %s' % (vr(g.vOR[2]), vr(g.vOR[1])))
        g.vOD = [g.A() for _ in range(5)]; t2 = g.A()
        for v in range(5):
            P('v_add_u32 %s, %d, v0' % (vr(t0), 64 * v)); P('v_mul_u32_u24 %s, 6554, %s' % (vr(t1), vr(t0))); P('v_lshrrev_b32 %s, 16, %s' % (vr(t1), vr(t1)))
            P('v_mul_u32_u24 %s, 10, %s' % (vr(t2), vr(t1))); P('v_sub_u32 %s, %s, %s' % (vr(t0), vr(t0), vr(t2)))
            P('v_mul_u32_u24 %s, 1280, %s' % (vr(t1), vr(t1))); P('v_lshl_add_u32 %s, %s, 4, %s' % (vr(g.vOD[v]), vr(t0), vr(t1)))
        g.vL4 = g.A(); P('v_and_b32 %s, 31, v0' % vr(t0)); P('v_lshlrev_b32 %s, 2, %s' % (vr(g.vL4), vr(t0)))
        g.vH4 = g.A(); P('v_and_b32 %s, 7, v0' % vr(t0)); P('v_lshlrev_b32 %s, 2, %s' % (vr(g.vH4), vr(t0)))
        g.vOS = g.A(); P('v_mul_u32_u24 %s, 40960, %s' % (vr(t0), vr(g.vI))); P('v_lshl_add_u32 %s, %s, 3, %s' % (vr(g.vOS), vr(g.vG), vr(t0)))
        g.vUF = g.A()
        P('v_lshrrev_b32 %s, 1, %s' % (vr(t0), vr(g.vG))); P('v_lshlrev_b32 %s, 9, %s' % (vr(t0), vr(t0))); P('v_and_b32 %s, 1, %s' % (vr(t1), vr(g.vG))); P('v_lshl_add_u32 %s, %s, 8, %s' % (vr(t0), vr(t1), vr(t0)))
        P('v_lshl_add_u32 %s, %s, 3, %s' % (vr(g.vUF), vr(g.vI), vr(t0)))
        g.F(t0); g.F(t1); g.F(t2)
        return P
    def granule(g, n, acc, zf, mid=()):
        P = Prog(); a, gi = divmod(n, 4)
        for p in range(8):
            for kk in range(2):
                P('ds_read_b64_tr_b16 %s, %s offset:%d' % (vr(zf + 4 * p + 2 * kk, 2), vr(g.vZR), 8704 * (n & 1) + 4352 * kk + 128 * p), needs=['zd%d' % n], gives=['zr%d' % n])
        ld = list(g.z2_dma(n + 2).groups) if n + 2 < 12 else []
        ld += list(mid)
        k = 0
        for p in range(8):
            for tb in range(2):
                ac = vr(acc + 16 * tb, 16)
                P('v_mfma_f32_32x32x16_bf16 %s, %s, %s, %s' % (ac, vr(zf + 4 * p, 4), ar(((gi * 8 + p) * 2 + tb) * 4, 4), '0' if (gi == 0 and p == 0) else ac))
                m = 2 * p + tb
                if m >= 5:
                    nb = -(-(len(ld) - k) // (16 - m)); P.extend(ld[k:k + nb]); k += nb
        return P
    def reduce_epi(g, a, acc, z1, bar_needs=()):
        P = Prog()
        for tb in range(2):
            for i in range(4):
                P('ds_write_b128 %s, %s offset:%d' % (vr(g.vRW), vr(acc + 16 * tb + 4 * i, 4), 4096 * tb + 256 * i), needs=['barR%d' % a], gives=['rw%d' % a])
        P('s_barrier', needs=['rw%d' % a] + list(bar_needs), gives=['barW%d' % a])
        t = g.A(32, 4)
        for src in range(4):
            for hh in range(2):
                P('ds_read_b128 %s, %s offset:%d' % (vr(t + 8 * src + 4 * hh, 4), vr(g.vRR), 8192 * src + 1024 * hh), needs=['barW%d' % a], gives=['rr%d' % a])
        for p in range(4):
            P('v_pk_add_f32 %s, %s, %s' % (vr(t + 2 * p, 2), vr(t + 2 * p, 2), vr(t + 8 + 2 * p, 2)))
        for p in range(4):
            P('v_pk_add_f32 %s, %s, %s' % (vr(t + 16 + 2 * p, 2), vr(t + 16 + 2 * p, 2), vr(t + 24 + 2 * p, 2)))
        for p in range(4):
            P('v_pk_add_f32 %s, %s, %s op_sel_hi:[1,0]' % (vr(t + 2 * p, 2), vr(t + 2 * p, 2), vr(g.vB2, 2)))
        for p in range(4):
            P('v_pk_add_f32 %s, %s, %s' % (vr(t + 2 * p, 2), vr(t + 2 * p, 2), vr(t + 16 + 2 * p, 2)))
        for p in range(4):
            P('v_pk_mul_f32 %s, %s, %s' % (vr(t + 2 * p, 2), vr(t + 2 * p, 2), vr(z1 + 8 * a + 2 * p, 2)))
        for p in range(4):
            P('v_cvt_pk_bf16_f32 %s, %s, %s' % (vr(t + 8 + p), vr(t + 2 * p), vr(t + 2 * p + 1)))
        P.group([I('s_add_u32 %s, %s, %d' % (sr(sT0), sr(sCB), 8 * a)), I('s_lshl_b32 %s, %s, 10' % (sr(sT0), sr(sT0))), I('s_add_u32 %s, %s, %s' % (sr(sT0), sr(sT0), sr(sHB))),
                 I('buffer_store_dwordx4 %s, %s, %s, %s offen sc1' % (vr(t + 8, 4), vr(g.vL16), srd('ws'), sr(sT0)), gives=['hst%d' % a])])
        g.F(t, 32)
        return P
    def hflag_base(g, a, dst):
        return ['s_lshl_b32 %s, %s, 2' % (sr(dst), sr(sRB)), 's_add_u32 %s, %s, %s' % (sr(dst), sr(dst), sr(sW)), 's_lshl_b32 %s, %s, 7' % (sr(dst), sr(dst)), 's_add_u32 %s, %s, %d' % (sr(dst), sr(dst), HF + a * 16384)]
    def hflag(g, P, a):
        g.flag_store(P, g.hflag_base(a, sT3) + ['s_lshl_b32 %s, %s, 2' % (sr(sT2), sr(sCB)), 's_add_u32 %s, %s, %s' % (sr(sT3), sr(sT3), sr(sT2))], ['hst%d' % a])
    def wout_dma(g, a, needs):
        P = Prog()
        base = WO0 if a == 0 else 40960 * (a - 1)
        for j in range(2):
            for v in range(5):
                grp = []
                if v == 0:
                    grp += [I('s_mul_i32 %s, %s, %d' % (sr(sBG), sr(sW), 96 * 1280)), I('s_mul_i32 %s, %s, 160' % (sr(sUD), sr(sCB))), I('s_add_u32 %s, %s, %s' % (sr(sUD), sr(sUD), sr(sBG))),
                            I('s_add_u32 %s, %s, %d' % (sr(sUD), sr(sUD), (96 * 4 * j + 32 * a) * 1280)), I('s_mul_i32 %s, %s, 5120' % (sr(sUM), sr(sW)))]
                grp += [I('s_add_u32 m0, %s, %d' % (sr(sUM), base + 5120 * 4 * j + 1024 * v)),
                        I('buffer_load_dwordx4 %s, %s, %s offen lds' % (vr(g.vOD[v]), srd('wout'), sr(sUD)), needs, ['wo%d' % a])]
                P.group(grp)
        return P
    def u_dma(g, needs):
        P = Prog()
        for v in range(5):
            grp = []
            if v == 0:
                grp += [I('s_lshl_b32 %s, %s, 3' % (sr(sUD), sr(sRB))), I('s_add_u32 %s, %s, %s' % (sr(sUD), sr(sUD), sr(sCB))), I('s_mul_i32 %s, %s, 20480' % (sr(sUD), sr(sUD))),
                        I('s_mul_i32 %s, %s, 5120' % (sr(sUM), sr(sW))), I('s_add_u32 %s, %s, %s' % (sr(sUD), sr(sUD), sr(sUM))), I('s_add_u32 %s, %s, %d' % (sr(sUD), sr(sUD), U))]
            if v == 4: grp += [I('s_add_u32 %s, %s, 4096' % (sr(sUD), sr(sUD)))]
            grp += [I('s_add_u32 m0, %s, %d' % (sr(sUM), UL + (4096 if v == 4 else 0))),
                    I('buffer_load_dwordx4 %s, %s, %s offen offset:%d sc1 lds' % (vr(g.vL16), srd('ws'), sr(sUD), 1024 * (v & 3)), needs, ['ud'])]
            P.group(grp)
        return P
    def tr_ksteps(g, P, steps, acc, first_zero=False):
        af = [g.A(20, 4), g.A(20, 4)]
        def rd(n):
            bv, imm, _, needs, gives = steps[n]
            return [[I('ds_read_b64_tr_b16 %s, %s offset:%d' % (vr(af[n & 1] + 4 * b + 2 * kk, 2), vr(bv), imm + 2560 * kk + 32 * b), needs, gives)] for b in range(5) for kk in range(2)]
        P.extend(rd(0))
        for n in range(len(steps)):
            nxt = rd(n + 1) if n + 1 < len(steps) else []
            for b in range(5):
                ac = vr(acc + 4 * b, 4)
                P('v_mfma_f32_16x16x32_bf16 %s, %s, %s, %s' % (ac, vr(af[n & 1] + 4 * b, 4), steps[n][2], '0' if (first_zero and n == 0) else ac))
                P.extend(nxt[2 * b:2 * b + 2])
        g.F(af[0], 20); g.F(af[1], 20)
    def ypart(g, acc3):
        P = Prog(); tq = g.A(16, 4); t = g.A()
        P('v_and_b32 %s, 1, v0' % vr(t)); P('v_cmp_eq_u32 vcc, 0, %s' % vr(t))
        for k in range(4): P('v_xor_b32 %s, 0x80008000, %s' % (vr(g.vTi + k), vr(g.vTi + k)))
        for k in range(4):
            P('v_cndmask_b32 %s, 0, %s, vcc' % (vr(tq + k), vr(g.vTr + k))); P('v_cndmask_b32 %s, 0, %s, vcc' % (vr(tq + 4 + k), vr(g.vTi + k)))
            P('v_cndmask_b32 %s, %s, %s, vcc' % (vr(tq + 8 + k), vr(g.vTr + k), vr(g.vZERO))); P('v_cndmask_b32 %s, %s, %s, vcc' % (vr(tq + 12 + k), vr(g.vTi + k), vr(g.vZERO)))
        steps = [(g.vOR[0], UL - WO0 + 5120 * n, vr(tq + 4 * n, 4), ['barU'], ['urd']) for n in range(4)]
        g.tr_ksteps(P, steps, acc3, first_zero=True)
        for p in range(10): P('v_pk_mul_f32 %s, %s, %s op_sel_hi:[1,0]' % (vr(acc3 + 2 * p, 2), vr(acc3 + 2 * p, 2), vr(g.vGT, 2)))
        g.F(tq, 16); g.F(t); g.F(g.vTr, 4); g.F(g.vTi, 4)
        return P
    def h_loads(g, a, hf, needs):
        P = Prog()
        for c in range(8):
            grp = []
            if c % 4 == 0: grp.append(I('s_add_u32 %s, %s, %d' % (sr(sBG), sr(sHB), 1024 * (8 * a + c))))
            grp.append(I('buffer_load_dwordx4 %s, %s, %s, %s offen offset:%d sc1' % (vr(hf + 4 * c, 4), vr(g.vL16), srd('ws'), sr(sBG), 1024 * (c % 4)), needs))
            P.group(grp)
        return P
    def simple_poll(g, P_issue, P_check, vaddr, offcode, sreg, width, gives):
        f = g.A(width)
        ld = 'buffer_load_dword%s %s, %s, %s, %s offen sc1' % ('x2' if width == 2 else '', vr(f, width), vr(vaddr), srd('ws'), sr(sreg))
        P_issue.group([I(x) for x in offcode] + [I(ld)])
        if width == 1: cmpc = ['v_cmp_ne_u32 vcc, %s, %s' % (sr(sTAG), vr(f))]
        else: cmpc = ['v_xor_b32 %s, %s, %s' % (vr(f), sr(sTAG), vr(f)), 'v_xor_b32 %s, %s, %s' % (vr(f + 1), sr(sTAG), vr(f + 1)), 'v_or_b32 %s, %s, %s' % (vr(f), vr(f), vr(f + 1)), 'v_cmp_ne_u32 vcc, 0, %s' % vr(f)]
        g.poll_check(P_check, [ld], cmpc, gives)
        return f

    def build(g):
        g.ts_labels = []
        P = g.prologue()
        for ch in range(4): P.extend(g.chunk_loads(ch))
        P.extend(g.setup2())
        P('s_waitcnt lgkmcnt(0)')
        g.xf = g.A(80, 4); zz = g.A(24, 4); z1 = g.A(24, 4)
        g.hold(); s3 = g.setup3(); h3 = g.unhold()
        P.extend(merge(g.gemm1(0, zz, {}), s3, start=100, period=8)); g.release(h3)
        g.ts(P, 'zz_done')
        wsp = g.wsp_stream().groups
        C = Prog(); g.gelu(C, zz, 24); C.extend(g.stats_publish(zz))
        P.extend(merge(C, wsp[:16])); wsp = wsp[16:]
        g.ts(P, 'stats_pub')
        g.vST = g.A(8, 4)
        sl = Prog(); [sl(x) for x in g.stats_loads()]
        ex = {17: g.wd_loads(0), 18: g.wd_loads(1), 19: sl}
        P.extend(g.gemm1(10, z1, ex, first_bar_needs=['gw']))
        for x in g.vXD + g.vWD + g.vTA + g.vXR + g.vDD: g.F(x)
        P.extend(g.normalize(zz))
        g.F(zz, 24); g.F(g.vST, 8)
        E = Prog()
        E.extend(g.ft_loads())
        g.gelu(E, z1, 24)
        g.flag_store(E, g.colflag_off(ZF), ['z2st'])
        g.ts(E, 'zflag')
        E.extend(g.gate(z1))
        E.extend(g.cgemm())
        g.F(g.xf, 80)
        E.extend(g.step1())
        E.extend(g.setup4())
        P.extend(merge(E, wsp))
        for x in g.vSD + g.vSR: g.F(x)
        g.vB2 = g.A(2); P('v_mov_b32 %s, %s' % (vr(g.vB2), vr(g.vB)))
        off = ['s_lshl_b32 %s, %s, 2' % (sr(sOO), sr(sCB)), 's_add_u32 %s, %s, %s' % (sr(sOO), sr(sOO), sr(sW)), 's_lshl_b32 %s, %s, 7' % (sr(sOO), sr(sOO)), 's_add_u32 %s, %s, %d' % (sr(sOO), sr(sOO), ZF)]
        f = g.simple_poll(P, P, g.vL4, off, sOO, 1, ['zok']); g.F(f)
        g.ts(P, 'zok')
        P.extend(g.z2_dma(0)); P.extend(g.z2_dma(1))
        g.flag_store(P, g.colflag_off(UF), ['ust'])
        acc = g.A(32, 4); zf = g.A(32, 4); acc3 = g.A(20, 4)
        for a in range(3):
            for gi in range(4):
                mid = Prog()
                if a == 1 and gi == 0: g.hflag(mid, 0)
                if a == 2 and gi == 0: g.hflag(mid, 1)
                if a == 0 and gi == 2:
                    off = ['s_sub_u32 %s, 7, %s' % (sr(sOO), sr(sCB)), 's_min_u32 %s, %s, %s' % (sr(sOO), sr(sOO), sr(sCB)), 's_lshl_b32 %s, %s, 10' % (sr(sOO), sr(sOO)),
                           's_lshr_b32 %s, %s, 4' % (sr(sT0), sr(sRB)), 's_lshl_b32 %s, %s, 7' % (sr(sT0), sr(sT0)), 's_add_u32 %s, %s, %s' % (sr(sOO), sr(sOO), sr(sT0)), 's_add_u32 %s, %s, %d' % (sr(sOO), sr(sOO), UF)]
                    chk = Prog(); fu = g.simple_poll(mid, chk, g.vUF, off, sOO, 2, ['uok'])
                if a == 0 and gi == 3:
                    mid.extend(chk); mid.extend(g.u_dma(['uok', 'gwrd', 'barD'])); g.F(fu, 2)
                if a == 2 and gi == 1: mid.extend(g.wout_dma(0, ['barW1']))
                P.extend(g.granule(4 * a + gi, acc, zf, mid.groups))
            P('s_barrier', needs=(['cprd', 'wdrd'] if a == 0 else ['rr%d' % (a - 1)]), gives=['barR%d' % a])
            P.extend(g.reduce_epi(a, acc, z1, bar_needs={0: ['ud'], 1: ['urd'], 2: ['zr10', 'zr11']}[a]))
            if a == 0:
                P('s_nop 0', needs=['barW0'], gives=['barU'])
                P.extend(g.ypart(acc3))
            g.ts(P, 'third%d' % a) if a == 2 else None
        g.F(acc, 32); g.F(zf, 32); g.F(z1, 24)
        hf = [g.A(32, 4) for _ in range(3)]
        chk = [Prog(), Prog(), Prog()]; fs = []
        for a in range(2): fs.append(g.simple_poll(P, chk[a], g.vH4, g.hflag_base(a, sOO if a == 0 else sF), sOO if a == 0 else sF, 1, ['hok%d' % a]))
        P.extend(g.wout_dma(1, ['barW2']))
        g.hflag(P, 2)
        P.extend(g.wout_dma(2, ['barW2']))
        for a in range(2):
            P.extend(chk[a]); P.extend(g.h_loads(a, hf[a], ['hok%d' % a]))
        P('s_barrier', needs=['wo0', 'wo1', 'wo2'], gives=['barO'])
        fs.append(g.simple_poll(P, chk[2], g.vH4, g.hflag_base(2, sOO), sOO, 1, ['hok2']))
        Q = Prog()
        g.tr_ksteps(Q, [(g.vOR[a], 5120 * c, vr(hf[a] + 4 * c, 4), ['barO'], []) for a in range(2) for c in range(8)], acc3)
        half = len(Q.groups) // 2
        P.extend(Q.groups[:half]); P.extend(chk[2]); g.ts(P, 'hok2'); P.extend(g.h_loads(2, hf[2], ['hok2'])); P.extend(Q.groups[half:])
        g.tr_ksteps(P, [(g.vOR[2], 5120 * c, vr(hf[2] + 4 * c, 4), ['barO'], []) for c in range(8)], acc3)
        pk = g.A(10)
        P.group([I('s_mul_i32 %s, %s, 160' % (sr(sT0), sr(sCB))), I('s_add_u32 %s, %s, %s' % (sr(sT0), sr(sT0), sr(sX)))])
        for b in range(5):
            for h in range(2): P('v_cvt_pk_bf16_f32 %s, %s, %s' % (vr(pk + 2 * b + h), vr(acc3 + 4 * b + 2 * h), vr(acc3 + 4 * b + 2 * h + 1)))
            P('buffer_store_dwordx2 %s, %s, %s, %s offen offset:%d' % (vr(pk + 2 * b, 2), vr(g.vOS), srd('out'), sr(sT0), 32 * b))
        P.group([I('s_or_b32 %s, s2, %s' % (sr(sT0), sr(sW))), I('s_cmp_lg_u32 %s, 0' % sr(sT0)), I('s_cbranch_scc1 L_noep'),
                 I('s_add_u32 %s, %s, 1' % (sr(sT0), sr(sEP))), I('v_mov_b32 %s, %s' % (vr(g.vTAG), sr(sT0))), I('s_mov_b64 exec, 1'),
                 I('buffer_store_dword %s, %s, %s, 0 offen sc1' % (vr(g.vTAG), vr(g.vZERO), srd('ws'))), I('s_mov_b64 exec, -1'), I('L_noep:')])
        if g.opt.get('ts'):
            P('s_waitcnt vmcnt(0)'); g.ts(P, 'end'); P('s_waitcnt lgkmcnt(0)')
            P.group([I('s_lshl_b32 %s, s2, 2' % sr(sT0)), I('s_add_u32 %s, %s, %s' % (sr(sT0), sr(sT0), sr(sW))), I('s_lshl_b32 %s, %s, 6' % (sr(sT0), sr(sT0))), I('s_add_u32 %s, %s, %d' % (sr(sT0), sr(sT0), TS))])
            for k in range(g.nts):
                P('v_mov_b32 %s, %s' % (vr(pk), sr(sTS + 2 * k))); P('buffer_store_dword %s, %s, %s, %s offen offset:%d' % (vr(pk), vr(g.vZERO), srd('ws'), sr(sT0), 4 * k))
        if g.opt.get('spin'):
            P('s_waitcnt vmcnt(0) lgkmcnt(0)')
            if g.opt['spin'] == 'amp':
                P('s_memrealtime s[86:87]'); P('s_waitcnt lgkmcnt(0)'); P('s_sub_u32 s90, s86, s84'); P('s_mul_i32 s90, s90, 5')
            else: P('s_mov_b32 s90, %d' % g.opt['spin'])
            P.group([I('L_spin:'), I('s_memrealtime s[86:87]'), I('s_waitcnt lgkmcnt(0)'), I('s_sub_u32 s88, s86, s84'), I('s_cmp_lt_u32 s88, s90'), I('s_cbranch_scc1 L_spin')])
        P('s_endpgm')
        lines = finalize(P, verbose=True)
        lines += [x if x.endswith(':') else '    ' + x for x in g.slow]
        lines += ['L_end:', '    s_endpgm']
        print('vgpr high water', g.ra.hw)
        return lines

def make(opt):
    g = Gen(opt); lines = g.build()
    s = HEAD + '; @launch grid=(256,1,1) block=(256,1,1) lds=%d\n' % LDS_SIZE
    s += '.amdgcn_target "amdgcn-amd-amdhsa--gfx950"\n.text\n.globl %s\n.p2align 8\n.type %s,@function\n%s:\n' % (NAME, NAME, NAME)
    s += '\n'.join(lines) + '\n'
    s += '''.section .rodata,"a"
.p2align 6
.amdhsa_kernel %s
  .amdhsa_next_free_vgpr 512
  .amdhsa_next_free_sgpr 102
  .amdhsa_accum_offset 256
  .amdhsa_group_segment_fixed_size 0
  .amdhsa_kernarg_size 112
  .amdhsa_user_sgpr_count 2
  .amdhsa_user_sgpr_kernarg_segment_ptr 1
  .amdhsa_system_sgpr_workgroup_id_x 1
  .amdhsa_float_denorm_mode_32 3
.end_amdhsa_kernel
''' % NAME
    return s, g.ts_labels

if __name__ == '__main__':
    s, _ = make({}); open('k1.s', 'w').write(s)
    s, lab = make({'ts': 1}); open('k1_ts.s', 'w').write(s); open('k1_ts.labels', 'w').write(','.join(lab))
    s, _ = make({'spin': 10000}); open('k1_spin100.s', 'w').write(s)
    s, _ = make({'spin': 'amp'}); open('k1_amp.s', 'w').write(s)
    s, _ = make({'codepf': 0}); open('k1_nopf.s', 'w').write(s)
```
